```python
import torch

def _softmax(x, axis=-1):
    return torch.softmax(x, dim=axis)
def _gelu(x):
    return torch.nn.functional.gelu(x, approximate="tanh")
def _silu(x):
    return torch.nn.functional.silu(x)
def _sigmoid(x):
    return torch.sigmoid(x)
def _layernorm(x, axis=-1, eps=1e-5):
    m = x.mean(dim=axis, keepdim=True)
    v = x.var(dim=axis, keepdim=True, unbiased=False)
    return (x - m) / torch.sqrt(v + eps)
def _scatter_add(tgt, idx, src, axis=0):
    return tgt.clone().index_add_(axis, idx, src)
def _segment_sum(src, seg, n):
    out = torch.zeros((n,) + src.shape[1:], dtype=src.dtype)
    return out.index_add_(0, seg, src)
def _pad(x, pw):
    flat = tuple(v for pair in reversed(pw) for v in pair)
    return torch.nn.functional.pad(x, flat)

kernel_name = 'recurrent_scan__sliding_block__dense_activation_silu__prompt'

def setup_inputs():

    _w = (lambda a: (lambda t: t.to(torch.bfloat16) if t.is_floating_point() else t)(torch.as_tensor(a)))
    def _A_setup():
        B, S, D = 1, 2048, 448
        return {
            "x": _w((lambda *s: torch.randn(*s, dtype=torch.bfloat16) * 0.05)(B, S, D)),
            "wqkv": _w((lambda *s: torch.randn(*s, dtype=torch.bfloat16) * 0.2)(D, 3 * D)),
            "wo": _w((lambda *s: torch.randn(*s, dtype=torch.bfloat16) * 0.2)(D, D)),
        }
    _A_in = _A_setup()

    def _B_setup():
        B, S, D, F = 1, 2048, 448, 1792
        return {
            "x": _w((lambda *s: torch.randn(*s, dtype=torch.bfloat16) * 0.05)(B, S, D)),
            "w1": _w((lambda *s: torch.randn(*s, dtype=torch.bfloat16) * 3.2)(D, F) * (D ** -0.5)),
            "w2": _w((lambda *s: torch.randn(*s, dtype=torch.bfloat16) * 0.2)(F, D) * (F ** -0.5)),
        }
    _B_in = _B_setup()

    return {
        "A_x": _A_in["x"],
        "A_wqkv": _A_in["wqkv"],
        "A_wo": _A_in["wo"],
        "B_x": _B_in["x"],
        "B_w1": _B_in["w1"],
        "B_w2": _B_in["w2"],
    }

def reference(A_x, A_wqkv, A_wo, B_x, B_w1, B_w2):
    def _A_ref(x, wqkv, wo):
        B, S, D = x.shape
        H = 16; Dh = D // H; W = 256
        qkv = (lambda x, *d: x.permute(*d))((x @ wqkv).reshape(B, S, 3, H, Dh), 2, 0, 3, 1, 4)
        q, k, v = qkv[0], qkv[1], qkv[2]
        scores = torch.einsum("bhqd,bhkd->bhqk", q, k) * (Dh ** -0.5)
        idx = torch.arange(S)
        mask = (idx[:, None] - idx[None, :] >= 0) & (idx[:, None] - idx[None, :] < W)
        scores = torch.where(mask[None, None], scores, -1e9)
        p = _softmax(scores, axis=-1)
        o = torch.einsum("bhqk,bhkd->bhqd", p, v)
        return (lambda x, *d: x.permute(*d))(o, 0, 2, 1, 3).reshape(B, S, D) @ wo

    def _B_ref(x, w1, w2):
        h = torch.einsum("bsd,df->bsf", x, w1)
        h = _silu(h)
        out = torch.einsum("bsf,fd->bsd", h, w2)
        return out

    x = A_x
    xn = _layernorm(x, axis=-1)
    s = _A_ref(xn, A_wqkv, A_wo)
    g = _silu(_B_ref(xn, B_w1, B_w2))
    return x + s * g
```

```python
import re

TRANS = ("v_exp_f32", "v_log_f32", "v_rcp_f32", "v_rsq_f32", "v_sqrt_f32", "v_sin_f32", "v_cos_f32")

def _expand(tok):
    tok = tok.strip()
    neg = tok.startswith("-")
    if neg: tok = tok[1:]
    if tok.startswith("abs(") or tok.startswith("|"):
        tok = tok.strip("|").replace("abs(", "").replace(")", "")
    m = re.fullmatch(r"([vas])(\d+)", tok)
    if m: return [(m.group(1), int(m.group(2)))]
    m = re.fullmatch(r"([vas])\[(\d+):(\d+)\]", tok)
    if m: return [(m.group(1), i) for i in range(int(m.group(2)), int(m.group(3)) + 1)]
    if tok == "vcc": return [("s", 106), ("s", 107)]
    if tok == "exec": return [("s", 126), ("s", 127)]
    if tok == "m0": return [("s", 124)]
    return []

class Inst:
    __slots__ = ("text", "op", "w", "r", "kind", "srcc", "ab", "passes", "comment")
    def __init__(self, text):
        self.text = text
        t = text.split(";")[0].strip()
        parts = t.split(None, 1)
        op = parts[0]
        self.op = op
        rest = parts[1] if len(parts) > 1 else ""
        ops = [o.strip() for o in re.split(r",(?![^\[]*\])", rest)] if rest else []
        clean = []
        for o in ops:
            clean.append(o.split()[0] if o else o)
        mods = rest
        self.w, self.r = set(), set()
        self.srcc, self.ab, self.passes = set(), set(), 0
        base = re.sub(r"_e(32|64)$", "", op)
        E = lambda i: _expand(clean[i]) if i < len(clean) else []
        if op.startswith("v_mfma"):
            self.kind = "mfma"
            self.passes = 8 if "32x32x16" in op else 4
            self.w = set(E(0)); self.ab = set(E(1)) | set(E(2)); self.srcc = set(E(3))
            self.r = self.ab | self.srcc
        elif op.startswith("buffer_") or op.startswith("global_"):
            self.kind = "vmem"
            lds = bool(re.search(r"\blds\b", mods))
            if "store" in op or ("atomic" in op):
                for i in range(len(clean)): self.r |= set(E(i))
                if "atomic" in op and re.search(r"\bsc0\b", mods): self.w = set(E(0))
                if "store" in op: self.kind = "vstore"
            elif lds:
                for i in range(len(clean)): self.r |= set(E(i))
                self.r.add(("s", 124)); self.kind = "dma"
            else:
                self.w = set(E(0))
                for i in range(1, len(clean)): self.r |= set(E(i))
        elif op.startswith("ds_"):
            self.kind = "lds"
            if op.startswith("ds_read") or "_rtn" in op or "permute" in op or "swizzle" in op:
                self.w = set(E(0))
                for i in range(1, len(clean)): self.r |= set(E(i))
            else:
                for i in range(len(clean)): self.r |= set(E(i))
        elif op.startswith("v_"):
            self.kind = "valu"
            if base in TRANS: self.kind = "trans"
            if base.startswith("v_dot"): self.kind = "dot"
            self.w = set(E(0))
            st = 1
            if base in ("v_add_co_u32", "v_sub_co_u32", "v_addc_co_u32"):
                self.w |= set(E(1)); st = 2
            for i in range(st, len(clean)): self.r |= set(E(i))
            if base.startswith("v_permlane") and "swap" in base:
                self.w |= set(E(1)); self.r |= set(E(0)); self.kind = "perm"
            if base in ("v_fmac_f32", "v_dot2c_f32_bf16", "v_writelane_b32"): self.r |= set(E(0))
            if base == "v_cndmask_b32" and len(clean) == 3: self.r |= {("s", 106), ("s", 107)}
            if base in ("v_readfirstlane_b32", "v_readlane_b32"): self.kind = "rdlane"
            if self.kind == "dot": self.srcc = set(E(3)) if base == "v_dot2_f32_bf16" else set(E(0))
        elif op.startswith("s_"):
            self.kind = "salu"
            if op.startswith("s_cmp") or op.startswith("s_cbranch") or op in ("s_waitcnt", "s_barrier", "s_nop", "s_branch", "s_endpgm", "s_sleep", "s_setprio"):
                for i in range(len(clean)): self.r |= set(E(i))
            else:
                self.w = set(E(0))
                for i in range(1, len(clean)): self.r |= set(E(i))
        else:
            raise ValueError("unknown op " + text)
    def states(self):
        if self.op == "s_nop": return int(self.text.split()[1]) + 1
        return 1
    def isvalu(self):
        return self.kind in ("valu", "trans", "dot", "perm", "rdlane")

def vec(s): return {x for x in s if x[0] in "va"}
def sca(s): return {x for x in s if x[0] == "s"}

def need(p, c):
    n = 0
    pw, cr, cw = p.w, c.r, c.w
    if p.kind == "mfma":
        big = p.passes == 8
        if c.kind == "mfma":
            if pw & c.ab: n = max(n, 12 if big else 8)
            if pw & c.srcc:
                if not (pw == c.srcc and p.passes == c.passes): n = max(n, 10 if big else 6)
            elif pw & cw: n = max(n, 10 if big else 6)
        else:
            if (pw & cr) or (pw & cw): n = max(n, 12 if big else 8)
            if c.isvalu() and (p.srcc & cw): n = max(n, 7 if big else 3)
    if p.isvalu():
        if c.kind == "mfma" and (vec(pw) & cr): n = max(n, 2)
        if c.kind == "perm" and (vec(pw) & cr): n = max(n, 2)
        if c.kind == "rdlane" and (vec(pw) & cr): n = max(n, 1)
        if p.kind == "trans" and c.isvalu() and c.kind != "trans" and (pw & cr): n = max(n, 1)
        if p.kind == "trans" and c.kind == "trans" and (pw & cr): n = max(n, 1)
        if sca(pw):
            if c.isvalu() and (sca(pw) & cr): n = max(n, 4 if c.kind == "rdlane" or c.op.startswith("v_writelane") else 2)
            if c.kind in ("vmem", "vstore", "dma") and (sca(pw) & cr): n = max(n, 5)
            if c.kind == "salu" and (sca(pw) & cr): n = max(n, 1)
        if p.kind == "dot":
            if (pw & cr) or (pw & cw):
                same = c.kind == "dot" and re.sub(r"_e(32|64)$", "", c.op) == re.sub(r"_e(32|64)$", "", p.op)
                if same and (pw & c.srcc) and not (pw & (cr - c.srcc)): pass
                elif c.kind != "salu": n = max(n, 3)
        if "dpp" in c.text and (vec(pw) & cr): n = max(n, 2)
    if p.kind == "salu" and ("s", 124) in pw and c.kind == "dma": n = max(n, 1)
    if p.kind == "vstore" and ("x4" in p.op or "x3" in p.op) and (vec(p.r) & cw):
        n = max(n, 2)
    if p.kind == "lds" and ("b128" in p.op) and p.op.startswith("ds_write") and (vec(p.r) & cw) and c.isvalu():
        n = max(n, 2)
    return n

class Prog:
    def __init__(self):
        self.L = []
        self.vm_n = 0; self.vm_done = 0
        self.lg_n = 0; self.lg_done = 0
    def raw(self, s): self.L.append(s)
    def label(self, s): self.L.append(s + ":")
    def c(self, s): self.L.append("    ; " + s)
    def I(self, text):
        i = Inst(text)
        self.L.append(i)
        if i.kind in ("vmem", "vstore", "dma"):
            self.vm_n += 1; return self.vm_n
        if i.kind == "lds":
            self.lg_n += 1; return self.lg_n
        return None
    def __call__(self, text):
        r = None
        for ln in text.strip().split("\n"):
            ln = ln.strip()
            if not ln or ln.startswith(";"): continue
            if ln.endswith(":"): self.label(ln[:-1]); continue
            r = self.I(ln)
        return r
    def wait(self, vm=None, lg=None):
        parts = []
        if vm is not None and vm > self.vm_done:
            parts.append(f"vmcnt({min(63, self.vm_n - vm)})"); self.vm_done = max(vm, self.vm_n - 63 if self.vm_n - vm > 63 else vm)
        if lg is not None and lg > self.lg_done:
            parts.append(f"lgkmcnt({min(15, self.lg_n - lg)})"); self.lg_done = max(lg, self.lg_n - 15 if self.lg_n - lg > 15 else lg)
        if parts: self.I("s_waitcnt " + " ".join(parts))
    def wait_all(self, vm=False, lg=False, force=False):
        parts = []
        if vm and (force or self.vm_done < self.vm_n): parts.append("vmcnt(0)"); self.vm_done = self.vm_n
        if lg and (force or self.lg_done < self.lg_n): parts.append("lgkmcnt(0)"); self.lg_done = self.lg_n
        if parts: self.I("s_waitcnt " + " ".join(parts))
    def reset_counters(self):
        self.vm_n = self.vm_done = self.lg_n = self.lg_done = 0
    def text(self):
        out = []; hist = []
        nnop = 0
        for x in self.L:
            if isinstance(x, str):
                out.append(x); continue
            req = 0; d = 0
            for p in reversed(hist[-24:]):
                n = need(p, x)
                if n > d: req = max(req, n - d)
                d += p.states()
                if d >= 20: break
            if req:
                nop = Inst(f"s_nop {req-1}")
                out.append("    " + nop.text); hist.append(nop); nnop += 1
            out.append("    " + x.text); hist.append(x)
        self.nnop = nnop
        return "\n".join(out)
```

```python
import sys, math
from asmlib import Prog
KN = "recurrent_scan__sliding_block__dense_activation_silu__prompt"

QKV_T = 86016
HOFF, H_T = 0x600000, 114688
OOFF, O_T = 0xE00000, 32768
PROF = 0x1100000
WS_BYTES = 0x1200000
XS, WQS, W1S, MISC = 0, 49152, 86016, 155648
KOFF, VOFF, QOFF = 0, 24576, 49152
W2R, W2W = 65536, 22528
ST_ROW = MISC
ST_CSQ = MISC + 2048
ST_CS1 = MISC + 4096
ST_CNT = MISC + 6144
NREG1, NREG2 = 10, 8
SX, SWQ, SWO, SW1, SW2, SOUT, SDBG, SWS = [f"s[{i}:{i+3}]" for i in range(8, 40, 4)]
sWAVE, sW, sXCD, sIDX, sRB, sCB, sMB, sNB, sHD, sRBA, sROT, sHELP = [f"s{i}" for i in range(40, 52)]
sP0, sODD = "s52", "s53"
LOG2E = 1.4426950408889634
def fbits(x):
    import struct
    return "0x%08x" % struct.unpack("<I", struct.pack("<f", x))[0]
def vr(a, n=4): return f"v[{a}:{a+n-1}]"

class G:
    def __init__(self, prof=False):
        self.p = Prog(); self.prof = prof; self.nlab = 0; self.nstamp = 0
    def lab(self, s):
        self.nlab += 1; return f"L_{s}_{self.nlab}"
    def stamp(self, k):
        if not self.prof: return
        p = self.p
        p.wait_all(lg=True)
        p(f"s_memtime s[98:99]")
        p.I("s_waitcnt lgkmcnt(0)")
        p(f"v_writelane_b32 v255, s98, {k}")
    def stamp_flush(self):
        if not self.prof: return
        p = self.p
        p(f"""s_lshl_b32 s98, s2, 3
        s_add_u32 s98, s98, {sWAVE}
        s_lshl_b32 s98, s98, 8
        s_add_u32 s98, s98, {PROF}
        v_mbcnt_lo_u32_b32 v254, -1, 0
        v_mbcnt_hi_u32_b32 v254, -1, v254
        v_lshlrev_b32 v254, 2, v254
        buffer_store_dword v255, v254, {SWS}, s98 offen""")

    def barrier(self):
        self.p.wait_all(lg=True)
        self.p("s_barrier")

    def poll(self, voff, vreq, vt):
        p = self.p
        L0, L1 = self.lab("poll"), self.lab("pok")
        p(f"s_mov_b32 s60, 0")
        p.label(L0)
        p(f"buffer_load_dword v{vt}, v{voff}, {SDBG}, 0 offen sc1")
        p.wait_all(vm=True, force=True)
        p(f"""v_cmp_ge_u32 vcc, v{vt}, v{vreq}
        s_add_u32 s60, s60, 1
        s_nop 1
        s_cmp_eq_u64 vcc, -1
        s_cbranch_scc1 {L1}
        s_sleep 2
        s_cmp_lt_u32 s60, 0x40000
        s_cbranch_scc1 {L0}""")
        p.label(L1)

    def signal(self, which, srow, vt):
        p = self.p
        L = self.lab("sig")
        p.wait_all(vm=True, force=True)
        p(f"""s_mov_b64 exec, 1
        v_mov_b32 v{vt}, {ST_CNT + 4*which}
        v_mov_b32 v{vt+1}, 1""")
        p(f"ds_add_rtn_u32 v{vt}, v{vt}, v{vt+1}")
        p.wait_all(lg=True)
        p(f"""v_readfirstlane_b32 s60, v{vt}
        s_lshl_b32 s61, {srow}, 2
        s_add_u32 s61, s61, {64*which}
        s_cmp_lg_u32 s60, 3
        s_cbranch_scc1 {L}
        buffer_atomic_add v{vt+1}, off, {SDBG}, s61 sc1""")
        p.vm_done = p.vm_n
        p.vm_n -= 1; p.vm_done -= 1
        p.label(L)
        p("s_mov_b64 exec, -1")

    def prologue(self):
        p = self.p
        p(f"""s_cmp_ge_u32 s2, 256
        s_cbranch_scc1 L_end
        s_load_dwordx2 s[8:9], s[0:1], 0
        s_load_dwordx2 s[12:13], s[0:1], 8
        s_load_dwordx2 s[16:17], s[0:1], 16
        s_load_dwordx2 s[20:21], s[0:1], 32
        s_load_dwordx2 s[24:25], s[0:1], 40
        s_load_dwordx2 s[28:29], s[0:1], 48
        s_load_dwordx2 s[32:33], s[0:1], 56
        s_load_dwordx2 s[36:37], s[0:1], 64""")
        if self.prof:
            p("s_memtime s[96:97]")
        p(f"""s_getpc_b64 s[4:5]
        s_mov_b32 s6, CODE_BYTES
        s_mov_b32 s7, 0x00020000
        v_lshlrev_b32 v1, 7, v0
        buffer_load_dword v2, v1, s[4:7], 0 offen
        v_lshrrev_b32 v1, 6, v0
        v_and_b32 v0, 63, v0
        s_and_b32 {sXCD}, s2, 7
        s_lshr_b32 {sIDX}, s2, 3
        v_readfirstlane_b32 {sWAVE}, v1
        s_cmp_lt_u32 {sIDX}, 4
        s_cselect_b32 {sHELP}, 1, 0
        s_max_u32 s54, {sIDX}, 4
        s_sub_u32 s54, s54, 4
        s_mul_hi_u32 s55, s54, 0x24924925
        s_mul_i32 s56, s55, 7
        s_sub_u32 {sNB}, s54, s56
        s_lshl_b32 {sMB}, {sXCD}, 2
        s_add_u32 {sMB}, {sMB}, s55
        s_lshr_b32 {sRB}, {sXCD}, 1
        s_lshl_b32 {sRB}, {sRB}, 2
        s_add_u32 {sRB}, {sRB}, s55
        s_and_b32 {sCB}, {sXCD}, 1
        s_mul_i32 {sCB}, {sCB}, 7
        s_add_u32 {sCB}, {sCB}, {sNB}
        s_and_b32 {sODD}, {sIDX}, 1
        s_lshl_b32 {sHD}, {sXCD}, 1
        s_add_u32 {sHD}, {sHD}, {sODD}
        s_lshr_b32 {sRBA}, {sIDX}, 1
        s_mul_i32 {sP0}, {sHD}, 7
        s_lshr_b32 {sP0}, {sP0}, 1
        s_lshl_b32 {sROT}, {sRB}, 1
        s_add_u32 {sROT}, {sROT}, {sCB}
        s_mul_hi_u32 s55, {sROT}, 0x24924925
        s_mul_i32 s55, s55, 7
        s_sub_u32 {sROT}, {sROT}, s55
        s_and_b32 {sW}, {sWAVE}, 3
        s_mov_b32 s10, 1835008
        s_mov_b32 s11, 0x00020000
        s_mov_b32 s14, 1204224
        s_mov_b32 s15, 0x00020000
        s_mov_b32 s18, 401408
        s_mov_b32 s19, 0x00020000
        s_mov_b32 s22, 1605632
        s_mov_b32 s23, 0x00020000
        s_mov_b32 s26, 1605632
        s_mov_b32 s27, 0x00020000
        s_mov_b32 s30, 1835008
        s_mov_b32 s31, 0x00020000
        s_mov_b32 s34, 256
        s_mov_b32 s35, 0x00020000
        s_mov_b32 s38, {WS_BYTES}
        s_mov_b32 s39, 0x00020000""")
        if self.prof:
            p("v_mov_b32 v255, 0")
            p("s_waitcnt lgkmcnt(0)")
            p("v_writelane_b32 v255, s96, 0")
            p("s_memrealtime s[96:97]")
            p("s_waitcnt lgkmcnt(0)")
            p("v_writelane_b32 v255, s96, 62")
        p(f"""s_cmp_ge_u32 {sWAVE}, 4
        s_cbranch_scc1 L_roleB""")

    def trlane(self, d):
        p = self.p
        p(f"""v_lshrrev_b32 v{d}, 5, v0
        v_lshlrev_b32 v{d}, 3, v{d}
        v_bfe_u32 v{d+2}, v0, 2, 2
        v_add_u32 v{d}, v{d}, v{d+2}
        v_bfe_u32 v{d+1}, v0, 4, 1
        v_lshlrev_b32 v{d+1}, 5, v{d+1}
        v_and_b32 v{d+3}, 1, v0
        v_lshl_or_b32 v{d+1}, v{d+3}, 4, v{d+1}
        v_bfe_u32 v{d+3}, v0, 1, 1
        v_lshl_or_b32 v{d+1}, v{d+3}, 3, v{d+1}""")
    def xaddr(self, d, t):
        p = self.p
        p(f"""v_and_b32 v{t}, 31, v0
        v_lshrrev_b32 v{t+1}, 5, v0
        v_bfe_u32 v{t+2}, v0, 1, 3
        v_xor_b32 v{t+1}, v{t+1}, v{t+2}
        v_lshlrev_b32 v{t+1}, 4, v{t+1}
        v_lshl_or_b32 v{d}, v{t}, 7, v{t+1}
        s_lshl_b32 s54, {sW}, 12
        v_add_u32 v{d}, s54, v{d}
        v_xor_b32 v{d+1}, 32, v{d}
        v_xor_b32 v{d+2}, 64, v{d}
        v_xor_b32 v{d+3}, 0x60, v{d}""")

    def roleA(self):
        p = self.p
        p.reset_counters()
        p.vm_n = 1
        XF = 8
        ACC = 120
        WB = 184
        AX = 216
        AQ = 220
        A1 = 221
        T = 228
        p(f"""s_cmp_eq_u32 {sHELP}, 1
        s_cbranch_scc1 L_A_attn""")
        self.xaddr(AX, T)
        self.trlane(T)
        p(f"""v_mul_u32_u24 v{AQ}, 192, v{T}
        v_add_u32 v{AQ}, v{AQ}, v{T+1}
        v_add_u32 v{AQ}, {WQS}, v{AQ}
        v_lshlrev_b32 v{A1}, 8, v{T}
        v_add_u32 v{A1}, v{A1}, v{T+1}
        v_lshl_or_b32 v{A1}, v{T+2}, 6, v{A1}
        v_add_u32 v{A1}, {W1S}, v{A1}
        v_xor_b32 v{A1+1}, 64, v{A1}
        v_xor_b32 v{A1+2}, 0x80, v{A1}
        v_xor_b32 v{A1+3}, 0xc0, v{A1}""")
        p("s_waitcnt lgkmcnt(0)")
        def rd_q(ks):
            c, s = divmod(ks, 4); slot = c % 3; b = WB + 16 * (ks & 1)
            t0 = p(f"ds_read_b128 {vr(XF+4*ks)}, v{AX+s} offset:{XS + slot*16384}")
            for t in range(3):
                for jj in range(2):
                    t0 = p(f"ds_read_b64_tr_b16 {vr(b+4*t+2*jj,2)}, v{AQ} offset:{slot*12288 + (16*s+4*jj)*192 + 64*t}")
            return t0
        self.barrier()
        self.stamp(1)
        tok = rd_q(0)
        for ks in range(28):
            if ks < 27:
                if ks % 4 == 3:
                    self.barrier()
                    self.stamp(2 + ks // 4)
                nt = rd_q(ks + 1)
            p.wait(lg=tok)
            b = WB + 16 * (ks & 1)
            for t in range(3):
                a = ACC + 16 * t
                p(f"v_mfma_f32_32x32x16_bf16 {vr(a,16)}, {vr(b+4*t)}, {vr(XF+4*ks)}, {'0' if ks == 0 else vr(a,16)}")
            tok = nt
        self.stamp(8)
        self.barrier()
        self.stamp(9)
        ST = T
        MF = T + 4
        CF = T + 8
        p(f"""v_and_b32 v{T+12}, 31, v0
        v_lshlrev_b32 v{T+12}, 4, v{T+12}
        s_lshl_b32 s54, {sW}, 9
        v_add_u32 v{T+12}, s54, v{T+12}
        v_add_u32 v{T+12}, {ST_ROW}, v{T+12}
        v_lshlrev_b32 v{T+13}, 3, v0
        v_add_u32 v{T+13}, {ST_CSQ}, v{T+13}""")
        p(f"ds_read_b128 {vr(ST)}, v{T+12}")
        for t in range(3):
            p(f"ds_read_b64 {vr(WB+4*t,2)}, v{T+13} offset:{512*t}")
            p(f"v_mov_b32 v{WB+4*t+2}, 0")
            p(f"v_mov_b32 v{WB+4*t+3}, 0")
        p(f"v_mov_b32 v{MF+2}, 0")
        p(f"v_mov_b32 v{MF+3}, 0")
        p.wait_all(lg=True)
        p(f"v_mov_b32 v{MF}, v{ST}")
        p(f"v_mov_b32 v{MF+1}, v{ST}")
        for t in range(3):
            a = ACC + 16 * t
            p(f"v_mfma_f32_32x32x16_bf16 {vr(a,16)}, {vr(WB+4*t)}, {vr(MF)}, {vr(a,16)}")
        SA = T + 14
        p(f"""v_and_b32 v{SA}, 31, v0
        v_lshlrev_b32 v{SA}, 4, v{SA}
        v_lshrrev_b32 v{SA+1}, 5, v0
        v_mul_u32_u24 v{SA+1}, 0x240, v{SA+1}
        v_xor_b32 v{SA}, v{SA}, v{SA+1}
        v_xor_b32 v{SA+1}, 0x480, v{SA}
        s_lshl_b32 s54, {sRB}, 2
        s_add_u32 s54, s54, {sW}
        s_mul_i32 s55, s54, {QKV_T}
        s_mul_i32 s56, {sCB}, {12*512}
        s_add_u32 s55, s55, s56
        s_add_u32 s56, s55, 4096
        s_mul_i32 s57, {sCB}, 3
        s_mul_i32 s62, s54, {H_T}
        s_lshl_b32 s63, {sCB}, 13
        s_add_u32 s62, s62, s63
        s_add_u32 s62, s62, {HOFF}
        s_add_u32 s63, s62, 4096""")
        F = T + 16
        for t in range(3):
            a = ACC + 16 * t
            p(f"""s_add_u32 s58, s57, {t}
            s_cmp_lt_u32 s58, 14
            s_cselect_b32 s58, {fbits(28 ** -0.5 * LOG2E)}, 1.0
            v_mul_f32 v{F}, s58, v{ST+1}""")
            for i in range(8):
                p(f"v_pk_mul_f32 {vr(a+2*i,2)}, {vr(a+2*i,2)}, {vr(F,2)} op_sel_hi:[1,0]")
            for i in range(8):
                p(f"v_cvt_pk_bf16_f32 v{a+i}, v{a+2*i}, v{a+2*i+1}")
            for u in range(2):
                so, im = ("s55", 2048 * t) if t < 2 else ("s56", 0)
                p(f"buffer_store_dwordx4 {vr(a+4*u)}, v{SA+u}, {SWS}, {so} offen offset:{im} sc1")
        self.stamp(10)
        def rd_1(ks):
            c, s = divmod(ks, 4); slot = c % 4; b = WB + 16 * (ks & 1)
            for t in range(4):
                for jj in range(2):
                    t0 = p(f"ds_read_b64_tr_b16 {vr(b+4*t+2*jj,2)}, v{A1+t} offset:{slot*16384 + (16*s+4*jj)*256}")
            return t0
        tok = rd_1(0)
        for ks in range(28):
            if ks < 27:
                if ks % 4 == 3:
                    self.barrier()
                    self.stamp(11 + ks // 4)
                if ks == 11:
                    self.signal(0, sRB, T + 18)
                nt = rd_1(ks + 1)
            p.wait(lg=tok)
            b = WB + 16 * (ks & 1)
            for t in range(4):
                a = ACC + 16 * t
                p(f"v_mfma_f32_32x32x16_bf16 {vr(a,16)}, {vr(b+4*t)}, {vr(XF+4*ks)}, {'0' if ks == 0 else vr(a,16)}")
            tok = nt
        self.stamp(17)
        self.barrier()
        self.stamp(18)
        for t in range(4):
            p(f"ds_read_b64 {vr(WB+4*t,2)}, v{T+13} offset:{ST_CS1-ST_CSQ + 512*t}")
            p(f"v_mov_b32 v{WB+4*t+2}, 0")
            p(f"v_mov_b32 v{WB+4*t+3}, 0")
        p(f"v_lshlrev_b32 v{SA}, 4, v0")
        p.wait_all(lg=True)
        for t in range(4):
            a = ACC + 16 * t
            p(f"v_mfma_f32_32x32x16_bf16 {vr(a,16)}, {vr(WB+4*t)}, {vr(MF)}, {vr(a,16)}")
        E = 8
        p(f"v_mov_b32 v{F}, v{ST+3}")
        p(f"v_mov_b32 v{F+2}, v{ST+2}")
        for t in range(4):
            for u in range(2):
                a = ACC + 16 * t + 8 * u
                e = E + 8 * ((2 * t + u) & 1)
                o = E + 16 + 4 * (2 * t + u)
                for i in range(4):
                    p(f"v_pk_mul_f32 {vr(e+2*i,2)}, {vr(a+2*i,2)}, {vr(F,2)} op_sel_hi:[1,0]")
                for i in range(8):
                    p(f"v_exp_f32_e64 v{e+i}, v{e+i}")
                for i in range(4):
                    p(f"v_pk_fma_f32 {vr(e+2*i,2)}, {vr(e+2*i,2)}, {vr(F+2,2)}, {vr(F+2,2)} op_sel_hi:[1,0,0]")
                for i in range(8):
                    p(f"v_rcp_f32_e64 v{e+i}, v{e+i}")
                for i in range(4):
                    p(f"v_pk_mul_f32 {vr(e+2*i,2)}, {vr(e+2*i,2)}, {vr(a+2*i,2)}")
                for i in range(4):
                    p(f"v_cvt_pk_bf16_f32 v{o+i}, v{e+2*i}, v{e+2*i+1}")
                k = 2 * t + u
                so, im = ("s62", 1024 * k) if k < 4 else ("s63", 1024 * (k - 4))
                p(f"buffer_store_dwordx4 {vr(o)}, v{SA}, {SWS}, {so} offen offset:{im} sc1")
        self.stamp(19)
        self.attention()
        self.wo_final_A()

    def attention(self):
        p = self.p
        p.label("L_A_attn")
        S = 64
        O = 208
        QF = 224
        KB = 232
        KA = 248
        VA = 250
        MX = 252
        MK = 56
        T = 4
        p("s_waitcnt lgkmcnt(0)")
        p(f"""v_lshrrev_b32 v{T}, 5, v0
        v_add_u32 v{T+1}, {sP0}, v{T}
        v_and_b32 v{T+1}, 3, v{T+1}
        v_lshlrev_b32 v{T+1}, 6, v{T+1}
        v_and_b32 v{T+2}, 31, v0
        v_lshlrev_b32 v{T+3}, 4, v{T+2}
        v_xor_b32 v{T+1}, v{T+1}, v{T+3}
        v_lshl_or_b32 v{KA}, v{T}, 9, v{T+1}
        s_lshl_b32 s54, {sW}, 11
        v_add_u32 v{KA}, s54, v{KA}
        v_xor_b32 v{KA+1}, 0x480, v{KA}
        v_lshlrev_b32 v{T}, 2, v{T}
        v_sub_u32 v{T+2}, v{T+2}, v{T}""")
        for r in range(16):
            p(f"v_cmp_gt_i32 s[{64+2*r}:{65+2*r}], {8*(r>>2)+(r&3)}, v{T+2}")
        p(f"v_mov_b32 v{T}, 0xffff")
        p(f"v_mov_b32 v{T+1}, 0xffff0000")
        for i in range(8):
            p(f"v_cndmask_b32 v{MK+i}, 0, v{T}, s[{64+4*i}:{65+4*i}]")
            p(f"v_cndmask_b32 v{T+3}, 0, v{T+1}, s[{66+4*i}:{67+4*i}]")
            p(f"v_or_b32 v{MK+i}, v{MK+i}, v{T+3}")
        p(f"""v_bfe_u32 v{T}, v0, 4, 1
        v_and_b32 v{T+1}, 1, v0
        v_lshl_or_b32 v{T}, v{T}, 1, v{T+1}
        v_add_u32 v{T+1}, {sP0}, v{T}
        v_and_b32 v{T+1}, 3, v{T+1}
        v_lshrrev_b32 v{T+2}, 5, v0
        v_xor_b32 v{T+1}, v{T+1}, v{T+2}
        v_lshlrev_b32 v{T+1}, 6, v{T+1}
        v_lshl_or_b32 v{T+1}, v{T}, 9, v{T+1}
        v_bfe_u32 v{T+2}, v0, 2, 2
        v_lshl_or_b32 v{T+1}, v{T+2}, 4, v{T+1}
        v_bfe_u32 v{T+2}, v0, 1, 1
        v_lshl_or_b32 v{T+1}, v{T+2}, 3, v{T+1}
        v_add_u32 v{VA}, s54, v{T+1}
        v_xor_b32 v{VA+1}, 0x80, v{VA}""")
        self.stamp(20)
        self.barrier()
        self.stamp(21)
        for u in range(2):
            p(f"ds_read_b128 {vr(QF+4*u)}, v{KA+u} offset:{QOFF}")
        order = [0, 8, 1, 2, 3, 4, 5, 6, 7]
        def rd_k(n):
            j = order[n]; b = KB + 8 * (n & 1)
            for u in range(2):
                t0 = p(f"ds_read_b128 {vr(b+4*u)}, v{KA+u} offset:{KOFF + 2048*j}")
            return t0
        def maxes(j, first):
            a = S + 16 * j
            for i in range(8):
                m = MX + (i & 1)
                if first and i < 2:
                    p(f"v_max_f32 v{m}, v{a+2*i}, v{a+2*i+1}")
                else:
                    p(f"v_max3_f32 v{m}, v{a+2*i}, v{a+2*i+1}, v{m}")
        tok = rd_k(0)
        for n in range(9):
            if n < 8: nt = rd_k(n + 1)
            p.wait(lg=tok)
            j = order[n]; b = KB + 8 * (n & 1); a = S + 16 * j
            p(f"v_mfma_f32_32x32x16_bf16 {vr(a,16)}, {vr(b)}, {vr(QF)}, 0")
            p(f"v_mfma_f32_32x32x16_bf16 {vr(a,16)}, {vr(b+4)}, {vr(QF+4)}, {vr(a,16)}")
            if n == 2:
                for r in range(16):
                    p(f"v_cndmask_b32 v{S+r}, v{S+128+r}, v{S+r}, s[{64+2*r}:{65+2*r}]")
            if n == 3: maxes(0, True)
            if n >= 3: maxes(order[n - 1], False)
            tok = nt
        Lh = self.lab("noh")
        p(f"""s_cmp_eq_u32 {sHELP}, 1
        s_cbranch_scc1 {Lh}""")
        self.signal(1, sRB, T)
        p.label(Lh)
        def rd_v(j, b):
            for s in range(2):
                for jj in range(2):
                    t0 = p(f"ds_read_b64_tr_b16 {vr(b+4*s+2*jj,2)}, v{VA+jj} offset:{VOFF + 2048*j + 256*s}")
            return t0
        vorder = [1, 2, 3, 4, 5, 6, 7, 0, 8]
        vt = [None] * 9
        vt[0] = rd_v(vorder[0], KB)
        maxes(7, False)
        p(f"""v_max_f32 v{MX}, v{MX}, v{MX+1}
        v_mov_b32 v{MX+1}, v{MX}
        v_permlane32_swap_b32 v{MX}, v{MX+1}
        v_max_f32 v{MX}, v{MX}, v{MX+1}""")
        self.stamp(22)
        def soft(j):
            a = S + 16 * j
            for i in range(16):
                p(f"v_sub_f32 v{a+i}, v{a+i}, v{MX}")
            for i in range(16):
                p(f"v_exp_f32 v{a+i}, v{a+i}")
            for i in range(8):
                p(f"v_cvt_pk_bf16_f32 v{a+i}, v{a+2*i}, v{a+2*i+1}")
        def pv(n, pa):
            b = KB + 8 * (n & 1)
            p.wait(lg=vt[n])
            for s in range(2):
                p(f"v_mfma_f32_32x32x16_bf16 {vr(O,16)}, {vr(b+4*s)}, {vr(pa+4*s)}, {'0' if (n == 0 and s == 0) else vr(O,16)}")
        for n in range(8):
            j = vorder[n]
            vt[n + 1] = rd_v(vorder[n + 1], KB + 8 * ((n + 1) & 1))
            soft(j)
            if j == 0:
                for i in range(8):
                    p(f"v_bfi_b32 v{S+8+i}, v{MK+i}, 0, v{S+i}")
                    p(f"v_and_b32 v{S+i}, v{MK+i}, v{S+i}")
            pv(n, S + 16 * j)
        pv(8, S + 8)
        p(f"""s_cmp_eq_u32 {sODD}, 1
        s_cselect_b64 s[54:55], -1, 0
        s_cselect_b32 s56, -1, 0
        s_mov_b32 s57, 0
        s_mov_b32 s58, 0
        s_cselect_b32 s59, 0, -1
        s_lshl_b32 s60, {sRBA}, 2
        s_add_u32 s60, s60, {sW}
        s_lshl_b32 s60, s60, 15
        s_lshl_b32 s61, {sHD}, 11
        s_add_u32 s62, s60, s61
        s_add_u32 s62, s62, {OOFF}
        v_lshlrev_b32 v{T+12}, 4, v0
        v_cndmask_b32 v{T}, v{O+12}, v{O}, s[54:55]
        v_mov_b32 v{T+1}, v{T}
        v_permlane32_swap_b32 v{T}, v{T+1}
        v_cndmask_b32 v{T}, v{T+1}, v{T}, s[54:55]
        v_rcp_f32 v{T}, v{T}
        v_cndmask_b32 v{T+2}, v{T}, 0, s[56:57]
        v_cndmask_b32 v{T+4}, v{T}, 0, s[58:59]""")
        for i in range(8):
            f = T + 2 if i < 2 else (T + 4 if i >= 6 else T)
            p(f"v_pk_mul_f32 {vr(O+2*i,2)}, {vr(O+2*i,2)}, {vr(f,2)} op_sel_hi:[1,0]")
        for i in range(8):
            p(f"v_cvt_pk_bf16_f32 v{O+i}, v{O+2*i}, v{O+2*i+1}")
        for u in range(2):
            p(f"buffer_store_dwordx4 {vr(O+4*u)}, v{T+12}, {SWS}, s62 offen offset:{1024*u} sc1")
        self.stamp(23)
        self.signal(2, sRBA, T)
        self.stamp(24)
        p(f"""s_cmp_eq_u32 {sHELP}, 1
        s_cbranch_scc1 L_fin""")

    def w128_lane(self, VD, AD, T, base_s):
        p = self.p
        p(f"""v_lshrrev_b32 v{T}, 3, v0
        v_mul_u32_u24 v{T}, 896, v{T}
        v_and_b32 v{T+1}, 7, v0
        v_bfe_u32 v{T+2}, v0, 4, 1
        v_lshlrev_b32 v{T+2}, 2, v{T+2}
        v_xor_b32 v{T+1}, v{T+1}, v{T+2}
        v_lshl_add_u32 v{VD}, v{T+1}, 4, v{T}""")
        for i in range(1, 4):
            p(f"v_add_u32 v{VD+i}, {i*(8*896-1024)}, v{VD}")
        self.trlane(T)
        p(f"""v_lshlrev_b32 v{AD}, 7, v{T}
        v_add_u32 v{AD}, v{AD}, v{T+1}
        v_lshrrev_b32 v{T+2}, 1, v{T+2}
        v_lshl_or_b32 v{AD}, v{T+2}, 6, v{AD}
        v_add_u32 v{AD}, {base_s}, v{AD}
        v_xor_b32 v{AD+1}, 64, v{AD}""")

    def write_partials(self, ACC, base_s, T):
        p = self.p
        p(f"""v_and_b32 v{T}, 31, v0
        v_lshrrev_b32 v{T+1}, 5, v0
        v_lshlrev_b32 v{T+2}, 1, v{T+1}
        v_xor_b32 v{T}, v{T}, v{T+2}
        v_lshlrev_b32 v{T}, 4, v{T}
        v_lshl_or_b32 v{T}, v{T+1}, 10, v{T}
        v_xor_b32 v{T+1}, 64, v{T}
        v_xor_b32 v{T+2}, 0x80, v{T}
        v_xor_b32 v{T+3}, 0xc0, v{T}""")
        for i in range(4):
            p(f"v_add_u32 v{T+i}, {base_s}, v{T+i}")
        for a in range(2):
            for t in range(2):
                for u in range(2):
                    for e in range(2):
                        r = ACC + 16 * (2 * a + t) + 8 * u + 4 * e
                        p(f"ds_write_b128 v{T+2*t+u}, {vr(r)} offset:{e*8192 + (4*t+2*u)*1024 + a*512}")

    def wo_final_A(self):
        p = self.p
        VD, AD, T = 4, 8, 12
        WF = 32
        OF = 96
        ACC = 160
        p(f"s_lshl_b32 s56, {sW}, 14")
        self.w128_lane(VD, AD, T, "s56")
        L0 = self.lab("kvfree")
        p(f"v_mov_b32 v{T}, {ST_CNT+8}")
        p.label(L0)
        p(f"ds_read_b32 v{T+1}, v{T}")
        p.wait_all(lg=True)
        p(f"""v_readfirstlane_b32 s60, v{T+1}
        s_cmp_lt_u32 s60, 4
        s_cbranch_scc1 {L0}""")
        p(f"""s_mul_i32 s57, {sW}, {112*896}
        s_lshl_b32 s58, {sNB}, 7
        s_add_u32 s57, s57, s58""")
        for g in range(4):
            p(f"s_add_u32 m0, s56, {4096*g}")
            for i in range(4 if g < 3 else 2):
                p(f"buffer_load_dwordx4 v{VD+i}, {SWO}, s57 offen offset:{1024*i} lds")
            p(f"s_add_u32 s57, s57, {32*896}")
        p(f"""v_lshlrev_b32 v{T}, 2, v0
        s_lshr_b32 s54, {sMB}, 1
        s_add_u32 s54, s54, 32
        v_cmp_eq_u32 vcc, s54, v0
        v_cndmask_b32 v{T+1}, 0, 16, vcc
        v_lshlrev_b32 v{T+3}, 4, v0
        v_add_u32 v{T+4}, {O_T}, v{T+3}
        s_lshl_b32 s57, {sMB}, 16
        s_lshl_b32 s58, {sW}, 13
        s_add_u32 s57, s57, s58
        s_add_u32 s57, s57, {OOFF}
        s_add_u32 s58, s57, 4096""")
        p.wait_all(vm=True)
        rho = [0, 24, 56, 80]
        for k in range(8):
            for t in range(2):
                for jj in range(2):
                    p(f"ds_read_b64_tr_b16 {vr(WF+8*k+4*t+2*jj,2)}, v{AD+t} offset:{(rho[k>>1]+16*(k&1)+4*jj)*128}")
        self.stamp(25)
        self.poll(T, T + 1, T + 2)
        self.stamp(26)
        toks = []
        for k in range(8):
            for a in range(2):
                so, im = ("s57", 1024 * k) if k < 4 else ("s58", 1024 * (k - 4))
                t0 = p(f"buffer_load_dwordx4 {vr(OF+8*k+4*a)}, v{T+3+a}, {SWS}, {so} offen offset:{im} sc1")
            toks.append(t0)
        self.xload()
        p.wait_all(lg=True)
        for k in range(8):
            p.wait(vm=toks[k])
            for a in range(2):
                for t in range(2):
                    c = ACC + 16 * (2 * a + t)
                    p(f"v_mfma_f32_32x32x16_bf16 {vr(c,16)}, {vr(WF+8*k+4*t)}, {vr(OF+8*k+4*a)}, {'0' if k == 0 else vr(c,16)}")
        self.write_partials(ACC, "s56", T)
        self.stamp(27)
        p("s_branch L_final")

    def xload(self):
        p = self.p
        p(f"""s_lshl_b32 s60, {sMB}, 3
        s_add_u32 s60, s60, {sWAVE}
        s_mul_i32 s60, s60, {8*896}
        s_lshl_b32 s61, {sNB}, 7
        s_add_u32 s60, s60, s61
        v_lshrrev_b32 v244, 3, v0
        v_mul_u32_u24 v244, 896, v244
        v_and_b32 v245, 7, v0
        v_lshl_add_u32 v244, v245, 4, v244
        v_add_u32 v244, s60, v244
        buffer_load_dwordx4 v[240:243], v244, {SX}, 0 offen""")

    def final(self):
        p = self.p
        p.label("L_final")
        p("s_waitcnt vmcnt(0) lgkmcnt(0)")
        p.reset_counters()
        p("s_barrier")
        self.stamp(30)
        T = 4
        p(f"""v_lshrrev_b32 v{T}, 3, v0
        s_lshl_b32 s54, {sWAVE}, 3
        v_add_u32 v{T}, s54, v{T}
        v_and_b32 v{T+1}, 7, v0
        v_lshlrev_b32 v{T+2}, 1, v{T+1}
        v_xor_b32 v{T}, v{T}, v{T+2}
        v_lshlrev_b32 v{T}, 4, v{T}
        v_lshl_or_b32 v{T}, v{T+1}, 10, v{T}
        v_add_u32 v{T+1}, {W2R}, v{T}
        v_add_u32 v{T+2}, {W2R + 2*W2W}, v{T}""")
        Fp, Sp = 16, 48
        tf = []
        for w in range(4):
            for e in range(2):
                tf.append(p(f"ds_read_b128 {vr(Fp+8*w+4*e)}, v{T+1+(w>>1)} offset:{(w&1)*W2W + e*8192}"))
        ts = []
        for w in range(4):
            for e in range(2):
                ts.append(p(f"ds_read_b128 {vr(Sp+8*w+4*e)}, v{T} offset:{w*16384 + e*8192}"))
        p(f"v_mov_b32 v8, {fbits(-LOG2E)}")
        p(f"v_mov_b32 v10, 1.0")
        def red(b):
            for i in range(4):
                p(f"v_pk_add_f32 {vr(b+2*i,2)}, {vr(b+2*i,2)}, {vr(b+8+2*i,2)}")
                p(f"v_pk_add_f32 {vr(b+16+2*i,2)}, {vr(b+16+2*i,2)}, {vr(b+24+2*i,2)}")
            for i in range(4):
                p(f"v_pk_add_f32 {vr(b+2*i,2)}, {vr(b+2*i,2)}, {vr(b+16+2*i,2)}")
        p.wait(lg=tf[-1])
        red(Fp)
        e = Fp + 8
        for i in range(4):
            p(f"v_pk_mul_f32 {vr(e+2*i,2)}, {vr(Fp+2*i,2)}, v[8:9] op_sel_hi:[1,0]")
        for i in range(8):
            p(f"v_exp_f32 v{e+i}, v{e+i}")
        for i in range(4):
            p(f"v_pk_add_f32 {vr(e+2*i,2)}, {vr(e+2*i,2)}, v[10:11] op_sel_hi:[1,0]")
        for i in range(8):
            p(f"v_rcp_f32 v{e+i}, v{e+i}")
        p.wait(lg=ts[-1])
        red(Sp)
        for i in range(4):
            p(f"v_pk_mul_f32 {vr(e+2*i,2)}, {vr(e+2*i,2)}, {vr(Fp+2*i,2)}")
        X = 80
        for i in range(4):
            p(f"v_lshlrev_b32 v{X+2*i}, 16, v{240+i}")
            p(f"v_and_b32 v{X+2*i+1}, 0xffff0000, v{240+i}")
        for i in range(4):
            p(f"v_pk_fma_f32 {vr(X+2*i,2)}, {vr(Sp+2*i,2)}, {vr(e+2*i,2)}, {vr(X+2*i,2)}")
        for i in range(4):
            p(f"v_cvt_pk_bf16_f32 v{X+8+i}, v{X+2*i}, v{X+2*i+1}")
        p(f"buffer_store_dwordx4 {vr(X+8)}, v244, {SOUT}, 0 offen")
        p.label("L_fin")
        if self.prof:
            p("s_waitcnt vmcnt(0)")
            self.stamp(31)
            p("s_memrealtime s[96:97]")
            p("s_waitcnt lgkmcnt(0)")
            p("v_writelane_b32 v255, s96, 63")
            self.stamp_flush()
        p.label("L_end")

    def roleB(self):
        p = self.p
        p.label("L_roleB")
        p.reset_counters()
        p.vm_n = 1
        WF = 8
        ACC = 152
        HB = 216
        VX, VQ, V1 = 152, 156, 160
        AX, AQ, A1 = 164, 168, 169
        FB = 172
        SUM, SQ, CS = 204, 206, 208
        T = 216
        VD, AD = 246, 250
        p(f"""v_mov_b32 v{T}, {ST_CNT}
        v_mov_b32 v{T+4}, 0
        v_mov_b32 v{T+5}, 0
        v_mov_b32 v{T+6}, 0
        v_mov_b32 v{T+7}, 0
        ds_write_b128 v{T}, {vr(T+4)}
        s_cmp_eq_u32 {sHELP}, 1
        s_cbranch_scc1 L_B_kv""")
        p(f"""s_lshl_b32 s54, {sRB}, 7
        s_lshl_b32 s55, {sW}, 5
        s_add_u32 s54, s54, s55
        v_lshrrev_b32 v{T}, 3, v0
        v_add_u32 v{T}, s54, v{T}
        v_mul_u32_u24 v{T}, 896, v{T}
        v_and_b32 v{T+1}, 7, v0
        v_lshrrev_b32 v{T+2}, 4, v0
        v_xor_b32 v{T+1}, v{T+1}, v{T+2}
        v_lshl_add_u32 v{VX}, v{T+1}, 4, v{T}
        v_xor_b32 v{T+1}, 4, v{T+1}
        v_lshl_add_u32 v{VX+1}, v{T+1}, 4, v{T}
        v_add_u32 v{VX+2}, {2*(8*896-1024)}, v{VX}
        v_add_u32 v{VX+3}, {3*(8*896-1024)}, v{VX+1}
        v_add_u32 v{VX+1}, {8*896-1024}, v{VX+1}""")
        p(f"""s_mul_i32 s54, {sW}, {16*2688}
        s_mul_i32 s55, {sCB}, 192
        s_add_u32 s54, s54, s55""")
        for i in range(3):
            p(f"""v_add_u32 v{T}, {64*i}, v0
            v_mul_u32_u24 v{T+1}, 5462, v{T}
            v_lshrrev_b32 v{T+1}, 16, v{T+1}
            v_mul_u32_u24 v{T+2}, 12, v{T+1}
            v_sub_u32 v{T+2}, v{T}, v{T+2}
            v_mul_u32_u24 v{T+1}, 2688, v{T+1}
            v_lshl_add_u32 v{T+1}, v{T+2}, 4, v{T+1}
            v_add_u32 v{T+1}, s54, v{T+1}
            v_subrev_u32 v{VQ+i}, {1024*i}, v{T+1}""")
        p(f"""s_lshl_b32 s56, {sW}, 12
        s_mul_i32 s57, {sW}, 3072
        s_add_u32 s57, s57, {WQS}
        s_add_u32 s58, s56, {W1S}
        s_mov_b32 s59, {sROT}
        s_waitcnt lgkmcnt(0)""")
        p.lg_done = p.lg_n
        def nextc(s):
            p(f"""s_add_u32 {s}, {s}, 1
            s_cmp_eq_u32 {s}, 7
            s_cselect_b32 {s}, 0, {s}""")
        def dma_q(c):
            slot = c % 3
            p(f"""s_add_u32 m0, s56, {XS + slot*16384}
            s_lshl_b32 s62, s59, 7""")
            for i in range(4):
                p(f"buffer_load_dwordx4 v{VX+i}, {SX}, s62 offen offset:{1024*i} lds")
            p(f"""s_add_u32 m0, s57, {slot*12288}
            s_mul_i32 s62, s59, {64*2688}""")
            for i in range(3):
                t0 = p(f"buffer_load_dwordx4 v{VQ+i}, {SWQ}, s62 offen offset:{1024*i} lds")
            nextc("s59")
            return t0
        def dma_1(c):
            slot = c % 4
            p(f"""s_add_u32 m0, s58, {slot*16384}
            s_mul_i32 s62, s59, {64*3584}""")
            for i in range(4):
                t0 = p(f"buffer_load_dwordx4 v{V1+i}, {SW1}, s62 offen offset:{1024*i} lds")
            nextc("s59")
            return t0
        tq = [None] * 7; t1 = [None] * 7
        tq[0] = dma_q(0)
        tq[1] = dma_q(1)
        p(f"""s_mul_i32 s54, {sW}, {16*3584}
        s_lshl_b32 s55, {sCB}, 8
        s_add_u32 s54, s54, s55
        v_lshrrev_b32 v{T}, 4, v0
        v_lshlrev_b32 v{T+2}, 2, v{T}
        v_mul_u32_u24 v{T}, 3584, v{T}
        v_and_b32 v{T+1}, 15, v0
        v_xor_b32 v{T+1}, v{T+1}, v{T+2}
        v_lshl_add_u32 v{T}, v{T+1}, 4, v{T}
        v_add_u32 v{V1}, s54, v{T}""")
        for i in range(1, 4):
            p(f"v_add_u32 v{V1+i}, {i*(4*3584-1024)}, v{V1}")
        self.xaddr(AX, T)
        self.trlane(T)
        p(f"""s_min_u32 s54, {sW}, 2
        s_lshl_b32 s54, s54, 6
        s_add_u32 s54, s54, {WQS}
        v_mul_u32_u24 v{AQ}, 192, v{T}
        v_add_u32 v{AQ}, v{AQ}, v{T+1}
        v_add_u32 v{AQ}, s54, v{AQ}
        v_lshlrev_b32 v{A1}, 8, v{T}
        v_add_u32 v{A1}, v{A1}, v{T+1}
        v_xor_b32 v{T+2}, {sW}, v{T+2}
        v_lshl_or_b32 v{A1}, v{T+2}, 6, v{A1}
        v_add_u32 v{A1}, {W1S}, v{A1}
        s_mov_b32 s63, 0x3f803f80""")
        for r in (SUM, SUM + 1, SQ, SQ + 1, CS, CS + 1):
            p(f"v_mov_b32 v{r}, 0")
        p(f"s_mul_i32 s55, {sW}, 21504")
        self.w128_lane(VD, AD, T, "s55")
        for c in range(7):
            p.wait(vm=tq[c])
            self.stamp(1 + c)
            self.barrier()
            if c + 2 < 7: tq[c + 2] = dma_q(c + 2)
            else: t1[c - 5] = dma_1(c - 5)
            if c == 6: t1[2] = dma_1(2)
            slot = c % 3
            for s in range(4):
                p(f"ds_read_b128 {vr(FB+4*s)}, v{AX+s} offset:{XS + slot*16384}")
            for s in range(4):
                for jj in range(2):
                    p(f"ds_read_b64_tr_b16 {vr(FB+16+4*s+2*jj,2)}, v{AQ} offset:{slot*12288 + (16*s+4*jj)*192}")
            p.wait_all(lg=True)
            for i in range(16):
                p(f"v_dot2_f32_bf16 v{SUM+(i&1)}, v{FB+i}, s63, v{SUM+(i&1)}")
                p(f"v_dot2_f32_bf16 v{SQ+(i&1)}, v{FB+i}, v{FB+i}, v{SQ+(i&1)}")
                p(f"v_dot2_f32_bf16 v{CS+(i&1)}, v{FB+16+i}, s63, v{CS+(i&1)}")
        def csfrag(off):
            p(f"""v_add_f32 v{CS}, v{CS}, v{CS+1}
            v_cvt_pk_bf16_f32 v{T+8}, v{CS}, v{CS}
            v_and_b32 v{T+9}, 0xffff0000, v{T+8}
            v_sub_f32 v{T+9}, v{CS}, v{T+9}
            v_cvt_pk_bf16_f32 v{T+9}, v{T+9}, v{T+9}
            v_lshlrev_b32 v{T+10}, 3, v0
            s_lshl_b32 s54, {sW}, 9
            s_add_u32 s54, s54, {off}
            v_add_u32 v{T+10}, s54, v{T+10}
            ds_write_b64 v{T+10}, {vr(T+8,2)}
            v_mov_b32 v{CS}, 0
            v_mov_b32 v{CS+1}, 0""")
        p(f"""v_add_f32 v{SUM}, v{SUM}, v{SUM+1}
        v_add_f32 v{SQ}, v{SQ}, v{SQ+1}
        v_mov_b32 v{SUM+1}, v{SUM}
        v_mov_b32 v{SQ+1}, v{SQ}
        v_permlane32_swap_b32 v{SUM}, v{SUM+1}
        v_permlane32_swap_b32 v{SQ}, v{SQ+1}
        v_add_f32 v{SUM}, v{SUM}, v{SUM+1}
        v_add_f32 v{SQ}, v{SQ}, v{SQ+1}
        v_mul_f32 v{SUM}, {fbits(-1.0/448)}, v{SUM}
        v_mul_f32 v{SQ}, {fbits(1.0/448)}, v{SQ}
        v_fma_f32 v{SQ}, -v{SUM}, v{SUM}, v{SQ}
        v_max_f32 v{SQ}, 0, v{SQ}
        v_add_f32 v{SQ}, {fbits(1e-5)}, v{SQ}
        v_rsq_f32 v{T+1}, v{SQ}
        v_sqrt_f32 v{T+2}, v{SQ}
        v_cvt_pk_bf16_f32 v{T}, v{SUM}, v{SUM}
        v_and_b32 v{T+4}, 0xffff0000, v{T}
        v_sub_f32 v{T+4}, v{SUM}, v{T+4}
        v_cvt_pk_bf16_f32 v{T}, v{SUM}, v{T+4}
        v_mul_f32 v{T+3}, {fbits(-LOG2E)}, v{T+1}
        v_and_b32 v{T+5}, 31, v0
        v_lshlrev_b32 v{T+5}, 4, v{T+5}
        s_lshl_b32 s54, {sW}, 9
        s_add_u32 s54, s54, {ST_ROW}
        v_add_u32 v{T+5}, s54, v{T+5}
        ds_write_b128 v{T+5}, {vr(T)}""")
        csfrag(ST_CSQ)
        p(f"""s_mul_i32 s57, {sW}, {448*896}
        s_lshl_b32 s54, {sNB}, 7
        s_add_u32 s57, s57, s54""")
        def dma_2(k0, n, base_s, slot0):
            t0 = None
            k = 0
            while k < n:
                m = min(2, n - k)
                p(f"s_add_u32 m0, {base_s}, {(slot0+k)*2048}")
                for i in range(2 * m):
                    t0 = p(f"buffer_load_dwordx4 v{VD+i}, {SW2}, s57 offen offset:{1024*i} lds")
                p(f"s_add_u32 s57, s57, {16*m*896}")
                k += m
            return t0
        def frag2(dst, slot):
            for t in range(2):
                for jj in range(2):
                    t0 = p(f"ds_read_b64_tr_b16 {vr(dst+4*t+2*jj,2)}, v{AD+t} offset:{slot*2048 + jj*512}")
            return t0
        tw = []
        for c in range(7):
            p.wait(vm=t1[c])
            self.stamp(9 + c)
            self.barrier()
            if c + 3 < 7: t1[c + 3] = dma_1(c + 3)
            elif c == 4: tw.append(dma_2(0, 4, "s55", 0))
            elif c == 5: tw.append(dma_2(4, 4, "s55", 4))
            elif c == 6: tw.append(dma_2(8, 2, "s55", 8))
            slot = c % 4
            for s in range(4):
                for jj in range(2):
                    p(f"ds_read_b64_tr_b16 {vr(FB+4*s+2*jj,2)}, v{A1} offset:{slot*16384 + (16*s+4*jj)*256}")
            p.wait_all(lg=True)
            for i in range(16):
                p(f"v_lshlrev_b32 v{FB+16+i}, 16, v{FB+i}")
                p(f"v_and_b32 v{FB+i}, 0xffff0000, v{FB+i}")
            for i in range(16):
                p(f"v_add_f32 v{CS}, v{CS}, v{FB+i}")
                p(f"v_add_f32 v{CS+1}, v{CS+1}, v{FB+16+i}")
        csfrag(ST_CS1)
        p.wait(vm=tw[1])
        for k in range(8): frag2(WF + 8 * k, k)
        p.wait(vm=tw[2])
        for k in range(8, NREG1): frag2(WF + 8 * k, k)
        self.stamp(17)
        self.barrier()
        self.stamp(18)
        p(f"""s_mul_i32 s54, {sW}, {W2W - 21504}
        s_add_u32 s54, s54, {W2R}
        v_add_u32 v{AD}, s54, v{AD}
        v_add_u32 v{AD+1}, s54, v{AD+1}
        s_add_u32 s55, s55, s54""")
        p.label("L_B_kv")
        p("s_waitcnt lgkmcnt(0)")
        p(f"""v_lshlrev_b32 v{T}, 2, v0
        s_max_u32 s54, {sRBA}, 2
        s_sub_u32 s54, s54, 2
        v_cmp_le_u32 vcc, s54, v0
        v_cmp_ge_u32 s[60:61], {sRBA}, v0
        s_and_b64 vcc, vcc, s[60:61]
        v_cndmask_b32 v{T+1}, 0, 14, vcc
        v_lshlrev_b32 v{T+3}, 4, v0""")
        self.poll(T, T + 1, T + 2)
        self.stamp(19)
        p(f"""s_lshl_b32 s54, {sRBA}, 2
        s_mul_i32 s56, {sW}, 3
        s_add_u32 s56, s56, s54
        s_lshl_b32 s58, {sP0}, 9
        s_mul_i32 s59, {sW}, 6144""")
        for i in range(3):
            p(f"""s_add_u32 s60, s56, {i}
            s_max_u32 s60, s60, 8
            s_sub_u32 s60, s60, 8
            s_mul_i32 s60, s60, {QKV_T}
            s_add_u32 s60, s60, s58
            s_add_u32 s61, s60, {112*512}
            s_add_u32 s60, s60, {56*512}
            s_add_u32 m0, s59, {KOFF + 2048*i}""")
            for u in range(2):
                p(f"buffer_load_dwordx4 v{T+3}, {SWS}, s60 offen offset:{1024*u} sc1 lds")
            p(f"s_add_u32 m0, s59, {VOFF + 2048*i}")
            for u in range(2):
                p(f"buffer_load_dwordx4 v{T+3}, {SWS}, s61 offen offset:{1024*u} sc1 lds")
        p(f"""s_add_u32 s60, s54, {sW}
        s_mul_i32 s60, s60, {QKV_T}
        s_add_u32 s60, s60, s58
        s_lshl_b32 s61, {sW}, 11
        s_add_u32 m0, s61, {QOFF}""")
        for u in range(2):
            tkv = p(f"buffer_load_dwordx4 v{T+3}, {SWS}, s60 offen offset:{1024*u} sc1 lds")
        p(f"""s_cmp_eq_u32 {sODD}, 1
        s_cselect_b32 s60, 0, 3
        s_cselect_b32 s62, 0, {3*512+8}
        s_add_u32 s60, s60, {sP0}
        s_and_b32 s60, s60, 3
        s_lshl_b32 s60, s60, 6
        v_and_b32 v{T+4}, 31, v0
        v_lshlrev_b32 v{T+4}, 4, v{T+4}
        v_xor_b32 v{T+4}, s60, v{T+4}
        v_add_u32 v{T+4}, s62, v{T+4}
        v_add_u32 v{T+5}, s61, v{T+4}
        v_lshrrev_b32 v{T+6}, 5, v0
        v_mul_u32_u24 v{T+6}, {VOFF}, v{T+6}
        v_add_u32 v{T+4}, v{T+4}, v{T+6}
        v_add_u32 v{T+4}, s59, v{T+4}
        v_mov_b32 v{T+8}, 0x3f80
        v_mov_b32 v{T+9}, 0
        v_mov_b32 v{T+11}, 0
        v_mov_b32 v{T+13}, 0
        v_mov_b32 v{T+15}, 0
        v_cmp_lt_u32 vcc, 31, v0""")
        for i in range(3):
            p(f"""s_add_u32 s60, s56, {i}
            s_cmp_lt_u32 s60, 8
            s_cselect_b32 s60, 0xf14a, 0
            v_mov_b32 v{T+10+2*i}, s60
            v_cndmask_b32 v{T+10+2*i}, v{T+10+2*i}, v{T+8}, vcc""")
        Lh = self.lab("hskip")
        p(f"""s_cmp_eq_u32 {sHELP}, 1
        s_cbranch_scc1 {Lh}""")
        tb2 = dma_2(10, 11, "s55", 0)
        n_after = p.vm_n - tkv
        p.I(f"s_waitcnt vmcnt({n_after})")
        L2 = self.lab("hjoin")
        p(f"s_branch {L2}")
        p.label(Lh)
        p.I("s_waitcnt vmcnt(0)")
        p.label(L2)
        p.vm_done = tkv
        for i in range(3):
            p(f"ds_write_b64 v{T+4}, {vr(T+10+2*i,2)} offset:{2048*i}")
        p(f"ds_write_b64 v{T+5}, {vr(T+8,2)} offset:{QOFF}")
        self.stamp(20)
        self.barrier()
        p(f"""s_cmp_eq_u32 {sHELP}, 1
        s_cbranch_scc1 L_fin""")
        p.wait(vm=tb2)
        for k in range(NREG2): frag2(WF + 8 * (NREG1 + k), k)
        p.wait_all(lg=True)
        dma_2(21, 7, "s55", 0)
        slot_of = {18: 8, 19: 9, 20: 10}
        for k in range(21, 28): slot_of[k] = k - 21
        self.stamp(21)
        HA = 252
        p(f"""v_lshlrev_b32 v{T}, 2, v0
        s_lshr_b32 s54, {sMB}, 1
        s_add_u32 s54, s54, 16
        v_cmp_eq_u32 vcc, s54, v0
        v_cndmask_b32 v{T+1}, 0, 14, vcc
        v_lshlrev_b32 v{HA}, 4, v0
        v_add_u32 v{HA+1}, {H_T}, v{HA}
        s_mul_i32 s56, {sMB}, {2*H_T}
        s_mul_i32 s58, {sW}, {28*1024}
        s_add_u32 s56, s56, s58
        s_add_u32 s56, s56, {HOFF}""")
        self.xload()
        self.poll(T, T + 1, T + 2)
        self.stamp(22)
        free = [216, 224, 232]
        hb = {}; th = {}
        nissued = 0
        def issue_h():
            nonlocal nissued
            k = nissued
            b = free.pop(0); hb[k] = b
            for a in range(2):
                th[k] = p(f"buffer_load_dwordx4 {vr(b+4*a)}, v{HA+a}, {SWS}, s56 offen offset:{1024*(k&3)} sc1")
            if k & 3 == 3: p(f"s_add_u32 s56, s56, 4096")
            nissued += 1
        DEPTH = 5
        wfr = {k: WF + 8 * k for k in range(18)}
        tfr = {}
        while free and nissued < 28: issue_h()
        for k in range(28):
            kk = k + 8
            if 18 <= kk < 28 and k >= 10:
                b = free.pop(); wfr[kk] = b
                tfr[kk] = frag2(b, slot_of[kk])
            p.wait(vm=th[k], lg=tfr.get(k))
            for a in range(2):
                for t in range(2):
                    c = ACC + 16 * (2 * a + t)
                    p(f"v_mfma_f32_32x32x16_bf16 {vr(c,16)}, {vr(wfr[k]+4*t)}, {vr(hb[k]+4*a)}, {'0' if k == 0 else vr(c,16)}")
            free.append(hb[k]); free.append(wfr[k])
            while nissued < 28 and nissued - k - 1 < DEPTH and free: issue_h()
        self.stamp(23)
        self.write_partials(ACC, "s55", 4)
        self.stamp(24)

    def build(self):
        self.prologue()
        self.roleA()
        self.roleB()
        self.final()
        body = self.p.text()
        hdr = open("cdna_kernels/" + KN + ".s.ref").read().split("\n")
        top = [l for l in hdr if l.startswith(";") and "@launch" not in l and "Override" not in l and "grid=ceil" not in l]
        s = "\n".join(top) + "\n; @launch grid=(256,1,1) block=(512,1,1) lds=163840\n"
        s += f""".amdgcn_target "amdgcn-amd-amdhsa--gfx950"
.text
.globl {KN}_kernel
.p2align 8
.type {KN}_kernel,@function
{KN}_kernel:
{body}
    s_endpgm
L_code_end:
.set CODE_BYTES, L_code_end - {KN}_kernel - 128
.section .rodata,"a"
.p2align 6
.amdhsa_kernel {KN}_kernel
  .amdhsa_next_free_vgpr 256
  .amdhsa_next_free_sgpr 102
  .amdhsa_accum_offset 256
  .amdhsa_group_segment_fixed_size 0
  .amdhsa_kernarg_size 72
  .amdhsa_user_sgpr_count 2
  .amdhsa_user_sgpr_kernarg_segment_ptr 1
  .amdhsa_system_sgpr_workgroup_id_x 1
.end_amdhsa_kernel
"""
        return s

if __name__ == "__main__":
    prof = "--prof" in sys.argv
    out = [a for a in sys.argv[1:] if not a.startswith("--")]
    g = G(prof)
    s = g.build()
    path = out[0] if out else "cdna_kernels/" + KN + ".s"
    open(path, "w").write(s)
    print("wrote", path, "nops inserted:", g.p.nnop)
```

```python
import sys, math
from asmlib import Prog
KN = "recurrent_scan__sliding_block__dense_activation_silu__prompt"

QKV_T = 86016
HOFF, H_T = 0x600000, 114688
OOFF, O_T = 0xE00000, 32768
FLAGS = 0x1000000
PROF = 0x1100000
WS_BYTES = 0x1200000
XS, WQS, W1S, MISC = 0, 49152, 86016, 155648
KOFF, VOFF, QOFF = 0, 24576, 49152
W2R, W2W = 65536, 22528
ST_ROW = MISC
ST_CSQ = MISC + 2048
ST_CS1 = MISC + 4096
ST_CNT = MISC + 6144
NREG1, NREG2 = 10, 8
SX, SWQ, SWO, SW1, SW2, SOUT, SDBG, SWS = [f"s[{i}:{i+3}]" for i in range(8, 40, 4)]
sWAVE, sW, sXCD, sIDX, sRB, sCB, sMB, sNB, sHD, sRBA, sROT, sHELP = [f"s{i}" for i in range(40, 52)]
sP0, sODD = "s52", "s53"
sNON = "s[100:101]"
LOG2E = 1.4426950408889634
def fbits(x):
    import struct
    return "0x%08x" % struct.unpack("<I", struct.pack("<f", x))[0]
def vr(a, n=4): return f"v[{a}:{a+n-1}]"

class G:
    def __init__(self, prof=False):
        self.p = Prog(); self.prof = prof; self.nlab = 0; self.nstamp = 0
    def lab(self, s):
        self.nlab += 1; return f"L_{s}_{self.nlab}"
    def stamp(self, k, fine=False):
        if not self.prof or (fine and self.prof < 2): return
        p = self.p
        p.wait_all(lg=True)
        p(f"s_memtime s[98:99]")
        p.I("s_waitcnt lgkmcnt(0)")
        p(f"v_writelane_b32 v255, s98, {k}")
    def stamp_flush(self):
        if not self.prof: return
        p = self.p
        p(f"""s_lshl_b32 s98, s2, 3
        s_add_u32 s98, s98, {sWAVE}
        s_lshl_b32 s98, s98, 8
        s_add_u32 s98, s98, {PROF}
        v_mbcnt_lo_u32_b32 v254, -1, 0
        v_mbcnt_hi_u32_b32 v254, -1, v254
        v_lshlrev_b32 v254, 2, v254
        buffer_store_dword v255, v254, {SWS}, s98 offen""")

    def barrier(self):
        self.p.wait_all(lg=True)
        self.p("s_barrier")

    def get_nonce(self, vt):
        p = self.p
        L0, L1 = self.lab("non"), self.lab("nok")
        p(f"s_mov_b32 s60, 0")
        p.label(L0)
        p(f"buffer_load_dwordx2 {vr(vt,2)}, off, {SDBG}, 0 sc1")
        p.wait_all(vm=True, force=True)
        p(f"""v_readfirstlane_b32 s100, v{vt}
        v_readfirstlane_b32 s101, v{vt+1}
        s_add_u32 s60, s60, 1
        s_cmp_lg_u32 s100, 0
        s_cbranch_scc1 {L1}
        s_sleep 8
        s_cmp_lt_u32 s60, 0x10000
        s_cbranch_scc1 {L0}""")
        p.label(L1)

    def poll(self, voff, vt, sleep=4):
        p = self.p
        L0, L1 = self.lab("poll"), self.lab("pok")
        p(f"s_mov_b32 s60, 0")
        p.label(L0)
        p(f"buffer_load_dwordx2 {vr(vt,2)}, v{voff}, {SWS}, 0 offen sc1")
        p.wait_all(vm=True, force=True)
        p(f"""v_cmp_ne_u64 vcc, {sNON}, {vr(vt,2)}
        s_add_u32 s60, s60, 1
        s_nop 1
        s_and_b64 vcc, vcc, s[58:59]
        s_cbranch_scc0 {L1}
        s_sleep {sleep}
        s_cmp_lt_u32 s60, 0x10000
        s_cbranch_scc1 {L0}""")
        p.label(L1)

    def signal(self, which, srow, scol, vt):
        p = self.p
        p(f"""s_lshl_b32 s60, {srow}, 2
        s_add_u32 s60, s60, {sW}
        s_lshl_b32 s60, s60, 7
        s_lshl_b32 s61, {scol}, 3
        s_add_u32 s60, s60, s61
        s_add_u32 s60, s60, {FLAGS + 8192*which}
        v_mov_b32 v{vt}, s100
        v_mov_b32 v{vt+1}, s101
        s_mov_b64 exec, 1""")
        p.wait_all(vm=True, force=True)
        p(f"""buffer_store_dwordx2 {vr(vt,2)}, off, {SWS}, s60 sc1
        s_mov_b64 exec, -1""")

    def prologue(self):
        p = self.p
        p(f"""s_cmp_ge_u32 s2, 256
        s_cbranch_scc1 L_end
        s_load_dwordx2 s[8:9], s[0:1], 0
        s_load_dwordx2 s[12:13], s[0:1], 8
        s_load_dwordx2 s[16:17], s[0:1], 16
        s_load_dwordx2 s[20:21], s[0:1], 32
        s_load_dwordx2 s[24:25], s[0:1], 40
        s_load_dwordx2 s[28:29], s[0:1], 48
        s_load_dwordx2 s[32:33], s[0:1], 56
        s_load_dwordx2 s[36:37], s[0:1], 64""")
        if self.prof:
            p("s_memtime s[96:97]")
        p(f"""s_getpc_b64 s[4:5]
        s_mov_b32 s6, CODE_BYTES
        s_mov_b32 s7, 0x00020000
        s_and_b32 {sXCD}, s2, 7
        s_lshr_b32 {sIDX}, s2, 3
        v_lshlrev_b32 v1, 12, v0
        s_lshl_b32 s54, {sIDX}, 7
        v_add_u32 v1, s54, v1
        buffer_load_dword v2, v1, s[4:7], 0 offen
        v_lshrrev_b32 v1, 6, v0
        v_and_b32 v0, 63, v0
        v_readfirstlane_b32 {sWAVE}, v1
        s_cmp_lt_u32 {sIDX}, 4
        s_cselect_b32 {sHELP}, 1, 0
        s_max_u32 s54, {sIDX}, 4
        s_sub_u32 s54, s54, 4
        s_mul_hi_u32 s55, s54, 0x24924925
        s_mul_i32 s56, s55, 7
        s_sub_u32 {sNB}, s54, s56
        s_lshl_b32 {sMB}, {sXCD}, 2
        s_add_u32 {sMB}, {sMB}, s55
        s_lshr_b32 {sRB}, {sXCD}, 1
        s_lshl_b32 {sRB}, {sRB}, 2
        s_add_u32 {sRB}, {sRB}, s55
        s_and_b32 {sCB}, {sXCD}, 1
        s_mul_i32 {sCB}, {sCB}, 7
        s_add_u32 {sCB}, {sCB}, {sNB}
        s_and_b32 {sODD}, {sIDX}, 1
        s_lshl_b32 {sHD}, {sXCD}, 1
        s_add_u32 {sHD}, {sHD}, {sODD}
        s_lshr_b32 {sRBA}, {sIDX}, 1
        s_mul_i32 {sP0}, {sHD}, 7
        s_lshr_b32 {sP0}, {sP0}, 1
        s_lshl_b32 {sROT}, {sRB}, 1
        s_add_u32 {sROT}, {sROT}, {sCB}
        s_mul_hi_u32 s55, {sROT}, 0x24924925
        s_mul_i32 s55, s55, 7
        s_sub_u32 {sROT}, {sROT}, s55
        s_and_b32 {sW}, {sWAVE}, 3
        s_mov_b32 s10, 1835008
        s_mov_b32 s11, 0x00020000
        s_mov_b32 s14, 1204224
        s_mov_b32 s15, 0x00020000
        s_mov_b32 s18, 401408
        s_mov_b32 s19, 0x00020000
        s_mov_b32 s22, 1605632
        s_mov_b32 s23, 0x00020000
        s_mov_b32 s26, 1605632
        s_mov_b32 s27, 0x00020000
        s_mov_b32 s30, 1835008
        s_mov_b32 s31, 0x00020000
        s_mov_b32 s34, 256
        s_mov_b32 s35, 0x00020000
        s_mov_b32 s38, {WS_BYTES}
        s_mov_b32 s39, 0x00020000""")
        if self.prof:
            p("v_mov_b32 v255, 0")
            p("s_waitcnt lgkmcnt(0)")
            p("v_writelane_b32 v255, s96, 0")
            p("s_memrealtime s[96:97]")
            p("s_waitcnt lgkmcnt(0)")
            p("v_writelane_b32 v255, s96, 62")
        p(f"""s_cmp_ge_u32 {sWAVE}, 4
        s_cbranch_scc1 L_roleB""")

    def trlane(self, d):
        p = self.p
        p(f"""v_lshrrev_b32 v{d}, 5, v0
        v_lshlrev_b32 v{d}, 3, v{d}
        v_bfe_u32 v{d+2}, v0, 2, 2
        v_add_u32 v{d}, v{d}, v{d+2}
        v_bfe_u32 v{d+1}, v0, 4, 1
        v_lshlrev_b32 v{d+1}, 5, v{d+1}
        v_and_b32 v{d+3}, 1, v0
        v_lshl_or_b32 v{d+1}, v{d+3}, 4, v{d+1}
        v_bfe_u32 v{d+3}, v0, 1, 1
        v_lshl_or_b32 v{d+1}, v{d+3}, 3, v{d+1}""")
    def xaddr(self, d, t):
        p = self.p
        p(f"""v_and_b32 v{t}, 31, v0
        v_lshrrev_b32 v{t+1}, 5, v0
        v_bfe_u32 v{t+2}, v0, 1, 3
        v_xor_b32 v{t+1}, v{t+1}, v{t+2}
        v_lshlrev_b32 v{t+1}, 4, v{t+1}
        v_lshl_or_b32 v{d}, v{t}, 7, v{t+1}
        s_lshl_b32 s54, {sW}, 12
        v_add_u32 v{d}, s54, v{d}
        v_xor_b32 v{d+1}, 32, v{d}
        v_xor_b32 v{d+2}, 64, v{d}
        v_xor_b32 v{d+3}, 0x60, v{d}""")

    def roleA(self):
        p = self.p
        p.reset_counters()
        p.vm_n = 1
        XF = 8
        ACC = 120
        WB = 184
        AX = 216
        AQ = 220
        A1 = 221
        T = 228
        p(f"""s_memrealtime s[60:61]
        s_or_b32 s62, s2, {sWAVE}
        s_waitcnt lgkmcnt(0)
        s_cmp_lg_u32 s62, 0
        s_cbranch_scc1 L_A_notag
        s_or_b32 s60, s60, 1
        v_mov_b32 v{T}, s60
        v_mov_b32 v{T+1}, s61
        s_mov_b64 exec, 1
        buffer_store_dwordx2 {vr(T,2)}, off, {SDBG}, 0 sc1
        s_mov_b64 exec, -1
        L_A_notag:""")
        self.get_nonce(T + 2)
        p(f"""v_mov_b32 v{T}, {ST_CNT+16}
        ds_write_b64 v{T}, {vr(T+2,2)}
        s_cmp_eq_u32 {sHELP}, 1
        s_cbranch_scc1 L_A_attn""")
        self.xaddr(AX, T)
        self.trlane(T)
        p(f"""v_mul_u32_u24 v{AQ}, 192, v{T}
        v_add_u32 v{AQ}, v{AQ}, v{T+1}
        v_add_u32 v{AQ}, {WQS}, v{AQ}
        v_lshlrev_b32 v{A1}, 8, v{T}
        v_add_u32 v{A1}, v{A1}, v{T+1}
        v_lshl_or_b32 v{A1}, v{T+2}, 6, v{A1}
        v_add_u32 v{A1}, {W1S}, v{A1}
        v_xor_b32 v{A1+1}, 64, v{A1}
        v_xor_b32 v{A1+2}, 0x80, v{A1}
        v_xor_b32 v{A1+3}, 0xc0, v{A1}""")
        p("s_waitcnt lgkmcnt(0)")
        def rd_q(ks):
            c, s = divmod(ks, 4); slot = c % 3; b = WB + 16 * (ks & 1)
            t0 = p(f"ds_read_b128 {vr(XF+4*ks)}, v{AX+s} offset:{XS + slot*16384}")
            for t in range(3):
                for jj in range(2):
                    t0 = p(f"ds_read_b64_tr_b16 {vr(b+4*t+2*jj,2)}, v{AQ} offset:{slot*12288 + (16*s+4*jj)*192 + 64*t}")
            return t0
        self.barrier()
        self.stamp(1)
        tok = rd_q(0)
        for ks in range(28):
            if ks < 27:
                if ks % 4 == 3:
                    self.barrier()
                    self.stamp(2 + ks // 4, True)
                nt = rd_q(ks + 1)
            p.wait(lg=tok)
            b = WB + 16 * (ks & 1)
            for t in range(3):
                a = ACC + 16 * t
                p(f"v_mfma_f32_32x32x16_bf16 {vr(a,16)}, {vr(b+4*t)}, {vr(XF+4*ks)}, {'0' if ks == 0 else vr(a,16)}")
            tok = nt
        self.stamp(8)
        self.barrier()
        self.stamp(9)
        ST = T
        MF = T + 4
        CF = T + 8
        p(f"""v_and_b32 v{T+12}, 31, v0
        v_lshlrev_b32 v{T+12}, 4, v{T+12}
        s_lshl_b32 s54, {sW}, 9
        v_add_u32 v{T+12}, s54, v{T+12}
        v_add_u32 v{T+12}, {ST_ROW}, v{T+12}
        v_lshlrev_b32 v{T+13}, 3, v0
        v_add_u32 v{T+13}, {ST_CSQ}, v{T+13}""")
        p(f"ds_read_b128 {vr(ST)}, v{T+12}")
        for t in range(3):
            p(f"ds_read_b64 {vr(WB+4*t,2)}, v{T+13} offset:{512*t}")
            p(f"v_mov_b32 v{WB+4*t+2}, 0")
            p(f"v_mov_b32 v{WB+4*t+3}, 0")
        p(f"v_mov_b32 v{MF+2}, 0")
        p(f"v_mov_b32 v{MF+3}, 0")
        p.wait_all(lg=True)
        p(f"v_mov_b32 v{MF}, v{ST}")
        p(f"v_mov_b32 v{MF+1}, v{ST}")
        for t in range(3):
            a = ACC + 16 * t
            p(f"v_mfma_f32_32x32x16_bf16 {vr(a,16)}, {vr(WB+4*t)}, {vr(MF)}, {vr(a,16)}")
        SA = T + 14
        p(f"""v_and_b32 v{SA}, 31, v0
        v_lshlrev_b32 v{SA}, 4, v{SA}
        v_lshrrev_b32 v{SA+1}, 5, v0
        v_mul_u32_u24 v{SA+1}, 0x240, v{SA+1}
        v_xor_b32 v{SA}, v{SA}, v{SA+1}
        v_xor_b32 v{SA+1}, 0x480, v{SA}
        s_lshl_b32 s54, {sRB}, 2
        s_add_u32 s54, s54, {sW}
        s_mul_i32 s55, s54, {QKV_T}
        s_mul_i32 s56, {sCB}, {12*512}
        s_add_u32 s55, s55, s56
        s_add_u32 s56, s55, 4096
        s_mul_i32 s57, {sCB}, 3
        s_mul_i32 s62, s54, {H_T}
        s_lshl_b32 s63, {sCB}, 13
        s_add_u32 s62, s62, s63
        s_add_u32 s62, s62, {HOFF}
        s_add_u32 s63, s62, 4096""")
        F = T + 16
        for t in range(3):
            a = ACC + 16 * t
            p(f"""s_add_u32 s58, s57, {t}
            s_cmp_lt_u32 s58, 14
            s_cselect_b32 s58, {fbits(28 ** -0.5 * LOG2E)}, 1.0
            v_mul_f32 v{F}, s58, v{ST+1}""")
            for i in range(8):
                p(f"v_pk_mul_f32 {vr(a+2*i,2)}, {vr(a+2*i,2)}, {vr(F,2)} op_sel_hi:[1,0]")
            for i in range(8):
                p(f"v_cvt_pk_bf16_f32 v{a+i}, v{a+2*i}, v{a+2*i+1}")
            for u in range(2):
                so, im = ("s55", 2048 * t) if t < 2 else ("s56", 0)
                p(f"buffer_store_dwordx4 {vr(a+4*u)}, v{SA+u}, {SWS}, {so} offen offset:{im} sc1")
        self.stamp(10)
        def rd_1(ks):
            c, s = divmod(ks, 4); slot = c % 4; b = WB + 16 * (ks & 1)
            for t in range(4):
                for jj in range(2):
                    t0 = p(f"ds_read_b64_tr_b16 {vr(b+4*t+2*jj,2)}, v{A1+t} offset:{slot*16384 + (16*s+4*jj)*256}")
            return t0
        tok = rd_1(0)
        for ks in range(28):
            if ks < 27:
                if ks % 4 == 3:
                    self.barrier()
                    self.stamp(11 + ks // 4, True)
                if ks == 11:
                    self.signal(0, sRB, sCB, T + 18)
                nt = rd_1(ks + 1)
            p.wait(lg=tok)
            b = WB + 16 * (ks & 1)
            for t in range(4):
                a = ACC + 16 * t
                p(f"v_mfma_f32_32x32x16_bf16 {vr(a,16)}, {vr(b+4*t)}, {vr(XF+4*ks)}, {'0' if ks == 0 else vr(a,16)}")
            tok = nt
        self.stamp(17)
        self.barrier()
        self.stamp(18)
        for t in range(4):
            p(f"ds_read_b64 {vr(WB+4*t,2)}, v{T+13} offset:{ST_CS1-ST_CSQ + 512*t}")
            p(f"v_mov_b32 v{WB+4*t+2}, 0")
            p(f"v_mov_b32 v{WB+4*t+3}, 0")
        p(f"v_lshlrev_b32 v{SA}, 4, v0")
        p.wait_all(lg=True)
        for t in range(4):
            a = ACC + 16 * t
            p(f"v_mfma_f32_32x32x16_bf16 {vr(a,16)}, {vr(WB+4*t)}, {vr(MF)}, {vr(a,16)}")
        E = 8
        p(f"v_mov_b32 v{F}, v{ST+3}")
        p(f"v_mov_b32 v{F+2}, v{ST+2}")
        for t in range(4):
            for u in range(2):
                a = ACC + 16 * t + 8 * u
                e = E + 8 * ((2 * t + u) & 1)
                o = E + 16 + 4 * (2 * t + u)
                for i in range(4):
                    p(f"v_pk_mul_f32 {vr(e+2*i,2)}, {vr(a+2*i,2)}, {vr(F,2)} op_sel_hi:[1,0]")
                for i in range(8):
                    p(f"v_exp_f32_e64 v{e+i}, v{e+i}")
                for i in range(4):
                    p(f"v_pk_fma_f32 {vr(e+2*i,2)}, {vr(e+2*i,2)}, {vr(F+2,2)}, {vr(F+2,2)} op_sel_hi:[1,0,0]")
                for i in range(8):
                    p(f"v_rcp_f32_e64 v{e+i}, v{e+i}")
                for i in range(4):
                    p(f"v_pk_mul_f32 {vr(e+2*i,2)}, {vr(e+2*i,2)}, {vr(a+2*i,2)}")
                for i in range(4):
                    p(f"v_cvt_pk_bf16_f32 v{o+i}, v{e+2*i}, v{e+2*i+1}")
                k = 2 * t + u
                so, im = ("s62", 1024 * k) if k < 4 else ("s63", 1024 * (k - 4))
                p(f"buffer_store_dwordx4 {vr(o)}, v{SA}, {SWS}, {so} offen offset:{im} sc1")
        self.stamp(19)
        self.attention()
        self.wo_final_A()

    def attention(self):
        p = self.p
        p.label("L_A_attn")
        S = 64
        O = 208
        QF = 224
        KB = 232
        KA = 248
        VA = 250
        MX = 252
        MK = 56
        T = 4
        p("s_waitcnt lgkmcnt(0)")
        p(f"""v_lshrrev_b32 v{T}, 5, v0
        v_add_u32 v{T+1}, {sP0}, v{T}
        v_and_b32 v{T+1}, 3, v{T+1}
        v_lshlrev_b32 v{T+1}, 6, v{T+1}
        v_and_b32 v{T+2}, 31, v0
        v_lshlrev_b32 v{T+3}, 4, v{T+2}
        v_xor_b32 v{T+1}, v{T+1}, v{T+3}
        v_lshl_or_b32 v{KA}, v{T}, 9, v{T+1}
        s_lshl_b32 s54, {sW}, 11
        v_add_u32 v{KA}, s54, v{KA}
        v_xor_b32 v{KA+1}, 0x480, v{KA}
        v_lshlrev_b32 v{T}, 2, v{T}
        v_sub_u32 v{T+2}, v{T+2}, v{T}""")
        for r in range(16):
            p(f"v_cmp_gt_i32 s[{64+2*r}:{65+2*r}], {8*(r>>2)+(r&3)}, v{T+2}")
        p(f"v_mov_b32 v{T}, 0xffff")
        p(f"v_mov_b32 v{T+1}, 0xffff0000")
        for i in range(8):
            p(f"v_cndmask_b32 v{MK+i}, 0, v{T}, s[{64+4*i}:{65+4*i}]")
            p(f"v_cndmask_b32 v{T+3}, 0, v{T+1}, s[{66+4*i}:{67+4*i}]")
            p(f"v_or_b32 v{MK+i}, v{MK+i}, v{T+3}")
        p(f"""v_bfe_u32 v{T}, v0, 4, 1
        v_and_b32 v{T+1}, 1, v0
        v_lshl_or_b32 v{T}, v{T}, 1, v{T+1}
        v_add_u32 v{T+1}, {sP0}, v{T}
        v_and_b32 v{T+1}, 3, v{T+1}
        v_lshrrev_b32 v{T+2}, 5, v0
        v_xor_b32 v{T+1}, v{T+1}, v{T+2}
        v_lshlrev_b32 v{T+1}, 6, v{T+1}
        v_lshl_or_b32 v{T+1}, v{T}, 9, v{T+1}
        v_bfe_u32 v{T+2}, v0, 2, 2
        v_lshl_or_b32 v{T+1}, v{T+2}, 4, v{T+1}
        v_bfe_u32 v{T+2}, v0, 1, 1
        v_lshl_or_b32 v{T+1}, v{T+2}, 3, v{T+1}
        v_add_u32 v{VA}, s54, v{T+1}
        v_xor_b32 v{VA+1}, 0x80, v{VA}""")
        self.stamp(20)
        self.barrier()
        self.stamp(21)
        for u in range(2):
            p(f"ds_read_b128 {vr(QF+4*u)}, v{KA+u} offset:{QOFF}")
        order = [0, 8, 1, 2, 3, 4, 5, 6, 7]
        def rd_k(n):
            j = order[n]; b = KB + 8 * (n & 1)
            for u in range(2):
                t0 = p(f"ds_read_b128 {vr(b+4*u)}, v{KA+u} offset:{KOFF + 2048*j}")
            return t0
        def maxes(j, first):
            a = S + 16 * j
            for i in range(8):
                m = MX + (i & 1)
                if first and i < 2:
                    p(f"v_max_f32 v{m}, v{a+2*i}, v{a+2*i+1}")
                else:
                    p(f"v_max3_f32 v{m}, v{a+2*i}, v{a+2*i+1}, v{m}")
        tok = rd_k(0)
        for n in range(9):
            if n < 8: nt = rd_k(n + 1)
            p.wait(lg=tok)
            j = order[n]; b = KB + 8 * (n & 1); a = S + 16 * j
            p(f"v_mfma_f32_32x32x16_bf16 {vr(a,16)}, {vr(b)}, {vr(QF)}, 0")
            p(f"v_mfma_f32_32x32x16_bf16 {vr(a,16)}, {vr(b+4)}, {vr(QF+4)}, {vr(a,16)}")
            if n == 2:
                for r in range(16):
                    p(f"v_cndmask_b32 v{S+r}, v{S+128+r}, v{S+r}, s[{64+2*r}:{65+2*r}]")
            if n == 3: maxes(0, True)
            if n >= 3: maxes(order[n - 1], False)
            tok = nt
        Lh = self.lab("noh")
        p(f"""s_cmp_eq_u32 {sHELP}, 1
        s_cbranch_scc1 {Lh}""")
        self.signal(1, sRB, sCB, T)
        p.label(Lh)
        def rd_v(j, b):
            for s in range(2):
                for jj in range(2):
                    t0 = p(f"ds_read_b64_tr_b16 {vr(b+4*s+2*jj,2)}, v{VA+jj} offset:{VOFF + 2048*j + 256*s}")
            return t0
        vorder = [1, 2, 3, 4, 5, 6, 7, 0, 8]
        vt = [None] * 9
        vt[0] = rd_v(vorder[0], KB)
        maxes(7, False)
        p(f"""v_max_f32 v{MX}, v{MX}, v{MX+1}
        v_mov_b32 v{MX+1}, v{MX}
        v_permlane32_swap_b32 v{MX}, v{MX+1}
        v_max_f32 v{MX}, v{MX}, v{MX+1}""")
        self.stamp(22)
        def soft(j):
            a = S + 16 * j
            for i in range(16):
                p(f"v_sub_f32 v{a+i}, v{a+i}, v{MX}")
            for i in range(16):
                p(f"v_exp_f32 v{a+i}, v{a+i}")
            for i in range(8):
                p(f"v_cvt_pk_bf16_f32 v{a+i}, v{a+2*i}, v{a+2*i+1}")
        def pv(n, pa):
            b = KB + 8 * (n & 1)
            p.wait(lg=vt[n])
            for s in range(2):
                p(f"v_mfma_f32_32x32x16_bf16 {vr(O,16)}, {vr(b+4*s)}, {vr(pa+4*s)}, {'0' if (n == 0 and s == 0) else vr(O,16)}")
        for n in range(8):
            j = vorder[n]
            vt[n + 1] = rd_v(vorder[n + 1], KB + 8 * ((n + 1) & 1))
            soft(j)
            if j == 0:
                for i in range(8):
                    p(f"v_bfi_b32 v{S+8+i}, v{MK+i}, 0, v{S+i}")
                    p(f"v_and_b32 v{S+i}, v{MK+i}, v{S+i}")
            pv(n, S + 16 * j)
        pv(8, S + 8)
        p(f"""s_cmp_eq_u32 {sODD}, 1
        s_cselect_b64 s[54:55], -1, 0
        s_cselect_b32 s56, -1, 0
        s_mov_b32 s57, 0
        s_mov_b32 s58, 0
        s_cselect_b32 s59, 0, -1
        s_lshl_b32 s60, {sRBA}, 2
        s_add_u32 s60, s60, {sW}
        s_lshl_b32 s60, s60, 15
        s_lshl_b32 s61, {sHD}, 11
        s_add_u32 s62, s60, s61
        s_add_u32 s62, s62, {OOFF}
        v_lshlrev_b32 v{T+12}, 4, v0
        v_cndmask_b32 v{T}, v{O+12}, v{O}, s[54:55]
        v_mov_b32 v{T+1}, v{T}
        v_permlane32_swap_b32 v{T}, v{T+1}
        v_cndmask_b32 v{T}, v{T+1}, v{T}, s[54:55]
        v_rcp_f32 v{T}, v{T}
        v_cndmask_b32 v{T+2}, v{T}, 0, s[56:57]
        v_cndmask_b32 v{T+4}, v{T}, 0, s[58:59]""")
        for i in range(8):
            f = T + 2 if i < 2 else (T + 4 if i >= 6 else T)
            p(f"v_pk_mul_f32 {vr(O+2*i,2)}, {vr(O+2*i,2)}, {vr(f,2)} op_sel_hi:[1,0]")
        for i in range(8):
            p(f"v_cvt_pk_bf16_f32 v{O+i}, v{O+2*i}, v{O+2*i+1}")
        for u in range(2):
            p(f"buffer_store_dwordx4 {vr(O+4*u)}, v{T+12}, {SWS}, s62 offen offset:{1024*u} sc1")
        self.stamp(23)
        p(f"""s_mov_b64 exec, 1
        v_mov_b32 v{T}, {ST_CNT+8}
        v_mov_b32 v{T+1}, 1
        ds_add_u32 v{T}, v{T+1}
        s_mov_b64 exec, -1""")
        self.signal(2, sRBA, sHD, T + 2)
        self.stamp(24)
        p(f"""s_cmp_eq_u32 {sHELP}, 1
        s_cbranch_scc1 L_fin""")

    def w128_lane(self, VD, AD, T, base_s):
        p = self.p
        p(f"""v_lshrrev_b32 v{T}, 3, v0
        v_mul_u32_u24 v{T}, 896, v{T}
        v_and_b32 v{T+1}, 7, v0
        v_bfe_u32 v{T+2}, v0, 4, 1
        v_lshlrev_b32 v{T+2}, 2, v{T+2}
        v_xor_b32 v{T+1}, v{T+1}, v{T+2}
        v_lshl_add_u32 v{VD}, v{T+1}, 4, v{T}""")
        for i in range(1, 4):
            p(f"v_add_u32 v{VD+i}, {i*(8*896-1024)}, v{VD}")
        self.trlane(T)
        p(f"""v_lshlrev_b32 v{AD}, 7, v{T}
        v_add_u32 v{AD}, v{AD}, v{T+1}
        v_lshrrev_b32 v{T+2}, 1, v{T+2}
        v_lshl_or_b32 v{AD}, v{T+2}, 6, v{AD}
        v_add_u32 v{AD}, {base_s}, v{AD}
        v_xor_b32 v{AD+1}, 64, v{AD}""")

    def write_partials(self, ACC, base_s, T):
        p = self.p
        p(f"""v_and_b32 v{T}, 31, v0
        v_lshrrev_b32 v{T+1}, 5, v0
        v_lshlrev_b32 v{T+2}, 1, v{T+1}
        v_xor_b32 v{T}, v{T}, v{T+2}
        v_lshlrev_b32 v{T}, 4, v{T}
        v_lshl_or_b32 v{T}, v{T+1}, 10, v{T}
        v_xor_b32 v{T+1}, 64, v{T}
        v_xor_b32 v{T+2}, 0x80, v{T}
        v_xor_b32 v{T+3}, 0xc0, v{T}""")
        for i in range(4):
            p(f"v_add_u32 v{T+i}, {base_s}, v{T+i}")
        for a in range(2):
            for t in range(2):
                for u in range(2):
                    for e in range(2):
                        r = ACC + 16 * (2 * a + t) + 8 * u + 4 * e
                        p(f"ds_write_b128 v{T+2*t+u}, {vr(r)} offset:{e*8192 + (4*t+2*u)*1024 + a*512}")

    def wo_final_A(self):
        p = self.p
        VD, AD, T = 4, 8, 12
        WF = 32
        OF = 96
        ACC = 160
        p(f"s_lshl_b32 s56, {sW}, 14")
        self.w128_lane(VD, AD, T, "s56")
        L0 = self.lab("kvfree")
        p(f"v_mov_b32 v{T}, {ST_CNT+8}")
        p.label(L0)
        p(f"ds_read_b32 v{T+1}, v{T}")
        p.wait_all(lg=True)
        p(f"""v_readfirstlane_b32 s60, v{T+1}
        s_cmp_lt_u32 s60, 4
        s_cbranch_scc1 {L0}""")
        p(f"""s_mul_i32 s57, {sW}, {112*896}
        s_lshl_b32 s58, {sNB}, 7
        s_add_u32 s57, s57, s58""")
        for g in range(4):
            p(f"s_add_u32 m0, s56, {4096*g}")
            for i in range(4 if g < 3 else 2):
                p(f"buffer_load_dwordx4 v{VD+i}, {SWO}, s57 offen offset:{1024*i} lds")
            p(f"s_add_u32 s57, s57, {32*896}")
        p(f"""v_and_b32 v{T}, 31, v0
        v_lshlrev_b32 v{T}, 3, v{T}
        s_lshl_b32 s54, {sMB}, 8
        s_add_u32 s54, s54, {FLAGS + 2*8192}
        v_add_u32 v{T}, s54, v{T}
        v_lshlrev_b32 v{T+4}, 4, v0
        v_add_u32 v{T+5}, {O_T}, v{T+4}
        s_lshl_b32 s57, {sMB}, 16
        s_lshl_b32 s58, {sW}, 13
        s_add_u32 s57, s57, s58
        s_add_u32 s57, s57, {OOFF}
        s_add_u32 s62, s57, 4096
        s_lshl_b32 s54, {sW}, 2
        s_lshl_b32 s58, 0x000f000f, s54
        s_mov_b32 s59, 0""")
        p.wait_all(vm=True)
        rho = [0, 24, 56, 80]
        for k in range(8):
            for t in range(2):
                for jj in range(2):
                    p(f"ds_read_b64_tr_b16 {vr(WF+8*k+4*t+2*jj,2)}, v{AD+t} offset:{(rho[k>>1]+16*(k&1)+4*jj)*128}")
        self.stamp(25)
        self.poll(T, T + 2)
        self.stamp(26)
        toks = []
        for k in range(8):
            for a in range(2):
                so, im = ("s57", 1024 * k) if k < 4 else ("s62", 1024 * (k - 4))
                t0 = p(f"buffer_load_dwordx4 {vr(OF+8*k+4*a)}, v{T+4+a}, {SWS}, {so} offen offset:{im} sc1")
            toks.append(t0)
        self.xload()
        p.wait_all(lg=True)
        for k in range(8):
            p.wait(vm=toks[k])
            for a in range(2):
                for t in range(2):
                    c = ACC + 16 * (2 * a + t)
                    p(f"v_mfma_f32_32x32x16_bf16 {vr(c,16)}, {vr(WF+8*k+4*t)}, {vr(OF+8*k+4*a)}, {'0' if k == 0 else vr(c,16)}")
        self.write_partials(ACC, "s56", T)
        self.stamp(27)
        p("s_branch L_final")

    def xload(self):
        p = self.p
        p(f"""s_lshl_b32 s60, {sMB}, 3
        s_add_u32 s60, s60, {sWAVE}
        s_mul_i32 s60, s60, {8*896}
        s_lshl_b32 s61, {sNB}, 7
        s_add_u32 s60, s60, s61
        v_lshrrev_b32 v244, 3, v0
        v_mul_u32_u24 v244, 896, v244
        v_and_b32 v245, 7, v0
        v_lshl_add_u32 v244, v245, 4, v244
        v_add_u32 v244, s60, v244
        buffer_load_dwordx4 v[240:243], v244, {SX}, 0 offen""")

    def final(self):
        p = self.p
        p.label("L_final")
        p("s_waitcnt vmcnt(0) lgkmcnt(0)")
        p.reset_counters()
        p("s_barrier")
        self.stamp(30)
        T = 4
        p(f"""v_lshrrev_b32 v{T}, 3, v0
        s_lshl_b32 s54, {sWAVE}, 3
        v_add_u32 v{T}, s54, v{T}
        v_and_b32 v{T+1}, 7, v0
        v_lshlrev_b32 v{T+2}, 1, v{T+1}
        v_xor_b32 v{T}, v{T}, v{T+2}
        v_lshlrev_b32 v{T}, 4, v{T}
        v_lshl_or_b32 v{T}, v{T+1}, 10, v{T}
        v_add_u32 v{T+1}, {W2R}, v{T}
        v_add_u32 v{T+2}, {W2R + 2*W2W}, v{T}""")
        Fp, Sp = 16, 48
        tf = []
        for w in range(4):
            for e in range(2):
                tf.append(p(f"ds_read_b128 {vr(Fp+8*w+4*e)}, v{T+1+(w>>1)} offset:{(w&1)*W2W + e*8192}"))
        ts = []
        for w in range(4):
            for e in range(2):
                ts.append(p(f"ds_read_b128 {vr(Sp+8*w+4*e)}, v{T} offset:{w*16384 + e*8192}"))
        p(f"v_mov_b32 v8, {fbits(-LOG2E)}")
        p(f"v_mov_b32 v10, 1.0")
        def red(b):
            for i in range(4):
                p(f"v_pk_add_f32 {vr(b+2*i,2)}, {vr(b+2*i,2)}, {vr(b+8+2*i,2)}")
                p(f"v_pk_add_f32 {vr(b+16+2*i,2)}, {vr(b+16+2*i,2)}, {vr(b+24+2*i,2)}")
            for i in range(4):
                p(f"v_pk_add_f32 {vr(b+2*i,2)}, {vr(b+2*i,2)}, {vr(b+16+2*i,2)}")
        p.wait(lg=tf[-1])
        red(Fp)
        e = Fp + 8
        for i in range(4):
            p(f"v_pk_mul_f32 {vr(e+2*i,2)}, {vr(Fp+2*i,2)}, v[8:9] op_sel_hi:[1,0]")
        for i in range(8):
            p(f"v_exp_f32 v{e+i}, v{e+i}")
        for i in range(4):
            p(f"v_pk_add_f32 {vr(e+2*i,2)}, {vr(e+2*i,2)}, v[10:11] op_sel_hi:[1,0]")
        for i in range(8):
            p(f"v_rcp_f32 v{e+i}, v{e+i}")
        p.wait(lg=ts[-1])
        red(Sp)
        for i in range(4):
            p(f"v_pk_mul_f32 {vr(e+2*i,2)}, {vr(e+2*i,2)}, {vr(Fp+2*i,2)}")
        X = 80
        for i in range(4):
            p(f"v_lshlrev_b32 v{X+2*i}, 16, v{240+i}")
            p(f"v_and_b32 v{X+2*i+1}, 0xffff0000, v{240+i}")
        for i in range(4):
            p(f"v_pk_fma_f32 {vr(X+2*i,2)}, {vr(Sp+2*i,2)}, {vr(e+2*i,2)}, {vr(X+2*i,2)}")
        for i in range(4):
            p(f"v_cvt_pk_bf16_f32 v{X+8+i}, v{X+2*i}, v{X+2*i+1}")
        p(f"buffer_store_dwordx4 {vr(X+8)}, v244, {SOUT}, 0 offen")
        p.label("L_fin")
        if self.prof:
            p("s_waitcnt vmcnt(0)")
            self.stamp(31)
            p("s_memrealtime s[96:97]")
            p("s_waitcnt lgkmcnt(0)")
            p("v_writelane_b32 v255, s96, 63")
            self.stamp_flush()
        p.label("L_end")

    def helper_prefetch(self, T):
        pass

    def roleB(self):
        p = self.p
        p.label("L_roleB")
        p.reset_counters()
        p.vm_n = 1
        WF = 8
        ACC = 152
        HB = 216
        VX, VQ, V1 = 152, 156, 160
        AX, AQ, A1 = 164, 168, 169
        FB = 172
        SUM, SQ, CS = 204, 206, 208
        T = 216
        VD, AD = 246, 250
        p(f"""v_mov_b32 v{T}, {ST_CNT}
        v_mov_b32 v{T+4}, 0
        v_mov_b32 v{T+5}, 0
        v_mov_b32 v{T+6}, 0
        v_mov_b32 v{T+7}, 0
        ds_write_b128 v{T}, {vr(T+4)}
        s_cmp_eq_u32 {sHELP}, 1
        s_cbranch_scc1 L_B_help""")
        p(f"""s_lshl_b32 s54, {sRB}, 7
        s_lshl_b32 s55, {sW}, 5
        s_add_u32 s54, s54, s55
        v_lshrrev_b32 v{T}, 3, v0
        v_add_u32 v{T}, s54, v{T}
        v_mul_u32_u24 v{T}, 896, v{T}
        v_and_b32 v{T+1}, 7, v0
        v_lshrrev_b32 v{T+2}, 4, v0
        v_xor_b32 v{T+1}, v{T+1}, v{T+2}
        v_lshl_add_u32 v{VX}, v{T+1}, 4, v{T}
        v_xor_b32 v{T+1}, 4, v{T+1}
        v_lshl_add_u32 v{VX+1}, v{T+1}, 4, v{T}
        v_add_u32 v{VX+2}, {2*(8*896-1024)}, v{VX}
        v_add_u32 v{VX+3}, {3*(8*896-1024)}, v{VX+1}
        v_add_u32 v{VX+1}, {8*896-1024}, v{VX+1}""")
        p(f"""s_mul_i32 s54, {sW}, {16*2688}
        s_mul_i32 s55, {sCB}, 192
        s_add_u32 s54, s54, s55""")
        for i in range(3):
            p(f"""v_add_u32 v{T}, {64*i}, v0
            v_mul_u32_u24 v{T+1}, 5462, v{T}
            v_lshrrev_b32 v{T+1}, 16, v{T+1}
            v_mul_u32_u24 v{T+2}, 12, v{T+1}
            v_sub_u32 v{T+2}, v{T}, v{T+2}
            v_mul_u32_u24 v{T+1}, 2688, v{T+1}
            v_lshl_add_u32 v{T+1}, v{T+2}, 4, v{T+1}
            v_add_u32 v{T+1}, s54, v{T+1}
            v_subrev_u32 v{VQ+i}, {1024*i}, v{T+1}""")
        p(f"""s_lshl_b32 s56, {sW}, 12
        s_mul_i32 s57, {sW}, 3072
        s_add_u32 s57, s57, {WQS}
        s_add_u32 s58, s56, {W1S}
        s_mov_b32 s59, {sROT}
        s_waitcnt lgkmcnt(0)""")
        p.lg_done = p.lg_n
        def nextc(s):
            p(f"""s_add_u32 {s}, {s}, 1
            s_cmp_eq_u32 {s}, 7
            s_cselect_b32 {s}, 0, {s}""")
        def dma_q(c):
            slot = c % 3
            p(f"""s_add_u32 m0, s56, {XS + slot*16384}
            s_lshl_b32 s62, s59, 7""")
            for i in range(4):
                p(f"buffer_load_dwordx4 v{VX+i}, {SX}, s62 offen offset:{1024*i} lds")
            p(f"""s_add_u32 m0, s57, {slot*12288}
            s_mul_i32 s62, s59, {64*2688}""")
            for i in range(3):
                t0 = p(f"buffer_load_dwordx4 v{VQ+i}, {SWQ}, s62 offen offset:{1024*i} lds")
            nextc("s59")
            return t0
        def dma_1(c):
            slot = c % 4
            p(f"""s_add_u32 m0, s58, {slot*16384}
            s_mul_i32 s62, s59, {64*3584}""")
            for i in range(4):
                t0 = p(f"buffer_load_dwordx4 v{V1+i}, {SW1}, s62 offen offset:{1024*i} lds")
            nextc("s59")
            return t0
        tq = [None] * 7; t1 = [None] * 7
        tq[0] = dma_q(0)
        tq[1] = dma_q(1)
        p(f"""s_mul_i32 s54, {sW}, {16*3584}
        s_lshl_b32 s55, {sCB}, 8
        s_add_u32 s54, s54, s55
        v_lshrrev_b32 v{T}, 4, v0
        v_lshlrev_b32 v{T+2}, 2, v{T}
        v_mul_u32_u24 v{T}, 3584, v{T}
        v_and_b32 v{T+1}, 15, v0
        v_xor_b32 v{T+1}, v{T+1}, v{T+2}
        v_lshl_add_u32 v{T}, v{T+1}, 4, v{T}
        v_add_u32 v{V1}, s54, v{T}""")
        for i in range(1, 4):
            p(f"v_add_u32 v{V1+i}, {i*(4*3584-1024)}, v{V1}")
        self.xaddr(AX, T)
        self.trlane(T)
        p(f"""s_min_u32 s54, {sW}, 2
        s_lshl_b32 s54, s54, 6
        s_add_u32 s54, s54, {WQS}
        v_mul_u32_u24 v{AQ}, 192, v{T}
        v_add_u32 v{AQ}, v{AQ}, v{T+1}
        v_add_u32 v{AQ}, s54, v{AQ}
        v_lshlrev_b32 v{A1}, 8, v{T}
        v_add_u32 v{A1}, v{A1}, v{T+1}
        v_xor_b32 v{T+2}, {sW}, v{T+2}
        v_lshl_or_b32 v{A1}, v{T+2}, 6, v{A1}
        v_add_u32 v{A1}, {W1S}, v{A1}
        s_mov_b32 s63, 0x3f803f80""")
        for r in (SUM, SUM + 1, SQ, SQ + 1, CS, CS + 1):
            p(f"v_mov_b32 v{r}, 0")
        p(f"s_mul_i32 s55, {sW}, 21504")
        self.w128_lane(VD, AD, T, "s55")
        for c in range(7):
            p.wait(vm=tq[c])
            self.stamp(1 + c, c > 0)
            self.barrier()
            if c + 2 < 7: tq[c + 2] = dma_q(c + 2)
            else: t1[c - 5] = dma_1(c - 5)
            if c == 6: t1[2] = dma_1(2)
            slot = c % 3
            for s in range(4):
                p(f"ds_read_b128 {vr(FB+4*s)}, v{AX+s} offset:{XS + slot*16384}")
            for s in range(4):
                for jj in range(2):
                    p(f"ds_read_b64_tr_b16 {vr(FB+16+4*s+2*jj,2)}, v{AQ} offset:{slot*12288 + (16*s+4*jj)*192}")
            p.wait_all(lg=True)
            for i in range(16):
                p(f"v_dot2_f32_bf16 v{SUM+(i&1)}, v{FB+i}, s63, v{SUM+(i&1)}")
                p(f"v_dot2_f32_bf16 v{SQ+(i&1)}, v{FB+i}, v{FB+i}, v{SQ+(i&1)}")
                p(f"v_dot2_f32_bf16 v{CS+(i&1)}, v{FB+16+i}, s63, v{CS+(i&1)}")
        def csfrag(off):
            p(f"""v_add_f32 v{CS}, v{CS}, v{CS+1}
            v_cvt_pk_bf16_f32 v{T+8}, v{CS}, v{CS}
            v_and_b32 v{T+9}, 0xffff0000, v{T+8}
            v_sub_f32 v{T+9}, v{CS}, v{T+9}
            v_cvt_pk_bf16_f32 v{T+9}, v{T+9}, v{T+9}
            v_lshlrev_b32 v{T+10}, 3, v0
            s_lshl_b32 s54, {sW}, 9
            s_add_u32 s54, s54, {off}
            v_add_u32 v{T+10}, s54, v{T+10}
            ds_write_b64 v{T+10}, {vr(T+8,2)}
            v_mov_b32 v{CS}, 0
            v_mov_b32 v{CS+1}, 0""")
        p(f"""v_add_f32 v{SUM}, v{SUM}, v{SUM+1}
        v_add_f32 v{SQ}, v{SQ}, v{SQ+1}
        v_mov_b32 v{SUM+1}, v{SUM}
        v_mov_b32 v{SQ+1}, v{SQ}
        v_permlane32_swap_b32 v{SUM}, v{SUM+1}
        v_permlane32_swap_b32 v{SQ}, v{SQ+1}
        v_add_f32 v{SUM}, v{SUM}, v{SUM+1}
        v_add_f32 v{SQ}, v{SQ}, v{SQ+1}
        v_mul_f32 v{SUM}, {fbits(-1.0/448)}, v{SUM}
        v_mul_f32 v{SQ}, {fbits(1.0/448)}, v{SQ}
        v_fma_f32 v{SQ}, -v{SUM}, v{SUM}, v{SQ}
        v_max_f32 v{SQ}, 0, v{SQ}
        v_add_f32 v{SQ}, {fbits(1e-5)}, v{SQ}
        v_rsq_f32 v{T+1}, v{SQ}
        v_sqrt_f32 v{T+2}, v{SQ}
        v_cvt_pk_bf16_f32 v{T}, v{SUM}, v{SUM}
        v_and_b32 v{T+4}, 0xffff0000, v{T}
        v_sub_f32 v{T+4}, v{SUM}, v{T+4}
        v_cvt_pk_bf16_f32 v{T}, v{SUM}, v{T+4}
        v_mul_f32 v{T+3}, {fbits(-LOG2E)}, v{T+1}
        v_and_b32 v{T+5}, 31, v0
        v_lshlrev_b32 v{T+5}, 4, v{T+5}
        s_lshl_b32 s54, {sW}, 9
        s_add_u32 s54, s54, {ST_ROW}
        v_add_u32 v{T+5}, s54, v{T+5}
        ds_write_b128 v{T+5}, {vr(T)}""")
        csfrag(ST_CSQ)
        p(f"""v_mov_b32 v{T+12}, {ST_CNT+16}
        ds_read_b64 {vr(T+12,2)}, v{T+12}""")
        p.wait_all(lg=True)
        p(f"""v_readfirstlane_b32 s100, v{T+12}
        v_readfirstlane_b32 s101, v{T+13}""")
        p(f"""s_mul_i32 s57, {sW}, {448*896}
        s_lshl_b32 s54, {sNB}, 7
        s_add_u32 s57, s57, s54""")
        def dma_2(k0, n, base_s, slot0):
            t0 = None
            k = 0
            while k < n:
                m = min(2, n - k)
                p(f"s_add_u32 m0, {base_s}, {(slot0+k)*2048}")
                for i in range(2 * m):
                    t0 = p(f"buffer_load_dwordx4 v{VD+i}, {SW2}, s57 offen offset:{1024*i} lds")
                p(f"s_add_u32 s57, s57, {16*m*896}")
                k += m
            return t0
        def frag2(dst, slot):
            for t in range(2):
                for jj in range(2):
                    t0 = p(f"ds_read_b64_tr_b16 {vr(dst+4*t+2*jj,2)}, v{AD+t} offset:{slot*2048 + jj*512}")
            return t0
        tw = []
        for c in range(7):
            p.wait(vm=t1[c])
            self.stamp(9 + c, c > 0)
            self.barrier()
            if c + 3 < 7: t1[c + 3] = dma_1(c + 3)
            elif c == 4: tw.append(dma_2(0, 4, "s55", 0))
            elif c == 5: tw.append(dma_2(4, 4, "s55", 4))
            elif c == 6: tw.append(dma_2(8, 2, "s55", 8))
            slot = c % 4
            for s in range(4):
                for jj in range(2):
                    p(f"ds_read_b64_tr_b16 {vr(FB+4*s+2*jj,2)}, v{A1} offset:{slot*16384 + (16*s+4*jj)*256}")
            p.wait_all(lg=True)
            for i in range(16):
                p(f"v_lshlrev_b32 v{FB+16+i}, 16, v{FB+i}")
                p(f"v_and_b32 v{FB+i}, 0xffff0000, v{FB+i}")
            for i in range(16):
                p(f"v_add_f32 v{CS}, v{CS}, v{FB+i}")
                p(f"v_add_f32 v{CS+1}, v{CS+1}, v{FB+16+i}")
        csfrag(ST_CS1)
        p.wait(vm=tw[1])
        for k in range(8): frag2(WF + 8 * k, k)
        p.wait(vm=tw[2])
        for k in range(8, NREG1): frag2(WF + 8 * k, k)
        self.stamp(17)
        self.barrier()
        self.stamp(18)
        p(f"""s_mul_i32 s54, {sW}, {W2W - 21504}
        s_add_u32 s54, s54, {W2R}
        v_add_u32 v{AD}, s54, v{AD}
        v_add_u32 v{AD+1}, s54, v{AD+1}
        s_add_u32 s55, s55, s54""")
        p("s_branch L_B_kv")
        p.label("L_B_help")
        p("s_waitcnt lgkmcnt(0)")
        self.helper_prefetch(T)
        self.get_nonce(T)
        p.label("L_B_kv")
        p(f"""s_mov_b32 s58, 0
        s_mov_b32 s59, 0""")
        for add, reg in ((56, "s58"), (59, "s58"), (112, "s58"), (115, "s58"), (0, "s59"), (3, "s59")):
            p(f"""s_add_u32 s54, {sP0}, {add}
            s_mul_i32 s54, s54, 5462
            s_lshr_b32 s54, s54, 16
            s_bitset1_b32 {reg}, s54""")
        p(f"""s_lshl_b32 s59, s59, 16
        s_or_b32 s59, s59, s58
        s_mul_i32 s58, s58, 0x10001
        s_lshl_b32 s54, {sRBA}, 2
        s_mul_i32 s56, {sW}, 3
        s_add_u32 s56, s56, s54
        s_add_u32 s54, s54, {sW}
        v_lshrrev_b32 v{T}, 4, v0
        v_add_u32 v{T+1}, s56, v{T}
        v_max_u32 v{T+1}, 8, v{T+1}
        v_subrev_u32 v{T+1}, 8, v{T+1}
        v_mov_b32 v{T+2}, s54
        v_cmp_eq_u32 vcc, 3, v{T}
        v_cndmask_b32 v{T+1}, v{T+1}, v{T+2}, vcc
        v_and_b32 v{T}, 15, v0
        v_lshlrev_b32 v{T}, 3, v{T}
        v_lshl_add_u32 v{T}, v{T+1}, 7, v{T}
        v_add_u32 v{T}, {FLAGS}, v{T}
        v_lshlrev_b32 v{T+3}, 4, v0""")
        self.poll(T, T + 4, 8)
        self.stamp(19)
        p(f"""s_lshl_b32 s54, {sRBA}, 2
        s_mul_i32 s56, {sW}, 3
        s_add_u32 s56, s56, s54
        s_lshl_b32 s58, {sP0}, 9
        s_mul_i32 s59, {sW}, 6144""")
        for i in range(3):
            p(f"""s_add_u32 s60, s56, {i}
            s_max_u32 s60, s60, 8
            s_sub_u32 s60, s60, 8
            s_mul_i32 s60, s60, {QKV_T}
            s_add_u32 s60, s60, s58
            s_add_u32 s61, s60, {112*512}
            s_add_u32 s60, s60, {56*512}
            s_add_u32 m0, s59, {KOFF + 2048*i}""")
            for u in range(2):
                p(f"buffer_load_dwordx4 v{T+3}, {SWS}, s60 offen offset:{1024*u} sc1 lds")
            p(f"s_add_u32 m0, s59, {VOFF + 2048*i}")
            for u in range(2):
                p(f"buffer_load_dwordx4 v{T+3}, {SWS}, s61 offen offset:{1024*u} sc1 lds")
        p(f"""s_add_u32 s60, s54, {sW}
        s_mul_i32 s60, s60, {QKV_T}
        s_add_u32 s60, s60, s58
        s_lshl_b32 s61, {sW}, 11
        s_add_u32 m0, s61, {QOFF}""")
        for u in range(2):
            tkv = p(f"buffer_load_dwordx4 v{T+3}, {SWS}, s60 offen offset:{1024*u} sc1 lds")
        p(f"""s_cmp_eq_u32 {sODD}, 1
        s_cselect_b32 s60, 0, 3
        s_cselect_b32 s62, 0, {3*512+8}
        s_add_u32 s60, s60, {sP0}
        s_and_b32 s60, s60, 3
        s_lshl_b32 s60, s60, 6
        v_and_b32 v{T+4}, 31, v0
        v_lshlrev_b32 v{T+4}, 4, v{T+4}
        v_xor_b32 v{T+4}, s60, v{T+4}
        v_add_u32 v{T+4}, s62, v{T+4}
        v_add_u32 v{T+5}, s61, v{T+4}
        v_lshrrev_b32 v{T+6}, 5, v0
        v_mul_u32_u24 v{T+6}, {VOFF}, v{T+6}
        v_add_u32 v{T+4}, v{T+4}, v{T+6}
        v_add_u32 v{T+4}, s59, v{T+4}
        v_mov_b32 v{T+8}, 0x3f80
        v_mov_b32 v{T+9}, 0
        v_mov_b32 v{T+11}, 0
        v_mov_b32 v{T+13}, 0
        v_mov_b32 v{T+15}, 0
        v_cmp_lt_u32 vcc, 31, v0""")
        for i in range(3):
            p(f"""s_add_u32 s60, s56, {i}
            s_cmp_lt_u32 s60, 8
            s_cselect_b32 s60, 0xf14a, 0
            v_mov_b32 v{T+10+2*i}, s60
            v_cndmask_b32 v{T+10+2*i}, v{T+10+2*i}, v{T+8}, vcc""")
        Lh = self.lab("hskip")
        p(f"""s_cmp_eq_u32 {sHELP}, 1
        s_cbranch_scc1 {Lh}""")
        tb2 = dma_2(10, 11, "s55", 0)
        n_after = p.vm_n - tkv
        p.I(f"s_waitcnt vmcnt({n_after})")
        L2 = self.lab("hjoin")
        p(f"s_branch {L2}")
        p.label(Lh)
        p.I("s_waitcnt vmcnt(0)")
        p.label(L2)
        p.vm_done = tkv
        for i in range(3):
            p(f"ds_write_b64 v{T+4}, {vr(T+10+2*i,2)} offset:{2048*i}")
        p(f"ds_write_b64 v{T+5}, {vr(T+8,2)} offset:{QOFF}")
        self.stamp(20)
        self.barrier()
        p(f"""s_cmp_eq_u32 {sHELP}, 1
        s_cbranch_scc1 L_fin""")
        p.wait(vm=tb2)
        for k in range(NREG2): frag2(WF + 8 * (NREG1 + k), k)
        p.wait_all(lg=True)
        dma_2(21, 7, "s55", 0)
        slot_of = {18: 8, 19: 9, 20: 10}
        for k in range(21, 28): slot_of[k] = k - 21
        self.stamp(21)
        HA = 252
        p(f"""v_and_b32 v{T}, 31, v0
        v_lshlrev_b32 v{T}, 3, v{T}
        s_lshl_b32 s54, {sMB}, 8
        s_add_u32 s54, s54, {FLAGS + 8192}
        v_add_u32 v{T}, s54, v{T}
        v_lshlrev_b32 v{HA}, 4, v0
        v_add_u32 v{HA+1}, {H_T}, v{HA}
        s_mul_i32 s56, {sMB}, {2*H_T}
        s_mul_i32 s58, {sW}, {28*1024}
        s_add_u32 s56, s56, s58
        s_add_u32 s56, s56, {HOFF}
        s_mul_i32 s54, {sW}, 7
        s_lshr_b32 s54, s54, 1
        s_lshl_b32 s58, 0x000f000f, s54
        s_mov_b32 s59, 0""")
        self.xload()
        self.poll(T, T + 2)
        self.stamp(22)
        free = [216, 224, 232]
        hb = {}; th = {}
        nissued = 0
        def issue_h():
            nonlocal nissued
            k = nissued
            b = free.pop(0); hb[k] = b
            for a in range(2):
                th[k] = p(f"buffer_load_dwordx4 {vr(b+4*a)}, v{HA+a}, {SWS}, s56 offen offset:{1024*(k&3)} sc1")
            if k & 3 == 3: p(f"s_add_u32 s56, s56, 4096")
            nissued += 1
        DEPTH = 5
        wfr = {k: WF + 8 * k for k in range(18)}
        tfr = {}
        while free and nissued < 28: issue_h()
        for k in range(28):
            kk = k + 8
            if 18 <= kk < 28 and k >= 10:
                b = free.pop(); wfr[kk] = b
                tfr[kk] = frag2(b, slot_of[kk])
            p.wait(vm=th[k], lg=tfr.get(k))
            for a in range(2):
                for t in range(2):
                    c = ACC + 16 * (2 * a + t)
                    p(f"v_mfma_f32_32x32x16_bf16 {vr(c,16)}, {vr(wfr[k]+4*t)}, {vr(hb[k]+4*a)}, {'0' if k == 0 else vr(c,16)}")
            free.append(hb[k]); free.append(wfr[k])
            while nissued < 28 and nissued - k - 1 < DEPTH and free: issue_h()
        self.stamp(23)
        self.write_partials(ACC, "s55", 4)
        self.stamp(24)

    def build(self):
        self.prologue()
        self.roleA()
        self.roleB()
        self.final()
        body = self.p.text()
        hdr = open("cdna_kernels/" + KN + ".s.ref").read().split("\n")
        top = [l for l in hdr if l.startswith(";") and "@launch" not in l and "Override" not in l and "grid=ceil" not in l]
        s = "\n".join(top) + "\n; @launch grid=(256,1,1) block=(512,1,1) lds=163840\n"
        s += f""".amdgcn_target "amdgcn-amd-amdhsa--gfx950"
.text
.globl {KN}_kernel
.p2align 8
.type {KN}_kernel,@function
{KN}_kernel:
{body}
    s_endpgm
L_code_end:
.set CODE_BYTES, L_code_end - {KN}_kernel - 128
.section .rodata,"a"
.p2align 6
.amdhsa_kernel {KN}_kernel
  .amdhsa_next_free_vgpr 256
  .amdhsa_next_free_sgpr 102
  .amdhsa_accum_offset 256
  .amdhsa_group_segment_fixed_size 0
  .amdhsa_kernarg_size 72
  .amdhsa_user_sgpr_count 2
  .amdhsa_user_sgpr_kernarg_segment_ptr 1
  .amdhsa_system_sgpr_workgroup_id_x 1
.end_amdhsa_kernel
"""
        return s

if __name__ == "__main__":
    prof = 2 if "--prof2" in sys.argv else (1 if "--prof" in sys.argv else 0)
    out = [a for a in sys.argv[1:] if not a.startswith("--")]
    g = G(prof)
    s = g.build()
    path = out[0] if out else "cdna_kernels/" + KN + ".s"
    open(path, "w").write(s)
    print("wrote", path, "nops inserted:", g.p.nnop)
```

```python
import re

TRANS = ("v_exp_f32", "v_log_f32", "v_rcp_f32", "v_rsq_f32", "v_sqrt_f32", "v_sin_f32", "v_cos_f32")

def _expand(tok):
    tok = tok.strip()
    neg = tok.startswith("-")
    if neg: tok = tok[1:]
    if tok.startswith("abs(") or tok.startswith("|"):
        tok = tok.strip("|").replace("abs(", "").replace(")", "")
    m = re.fullmatch(r"([vas])(\d+)", tok)
    if m: return [(m.group(1), int(m.group(2)))]
    m = re.fullmatch(r"([vas])\[(\d+):(\d+)\]", tok)
    if m: return [(m.group(1), i) for i in range(int(m.group(2)), int(m.group(3)) + 1)]
    if tok == "vcc": return [("s", 106), ("s", 107)]
    if tok == "exec": return [("s", 126), ("s", 127)]
    if tok == "m0": return [("s", 124)]
    return []

class Inst:
    __slots__ = ("text", "op", "w", "r", "kind", "srcc", "ab", "passes", "comment")
    def __init__(self, text):
        self.text = text
        t = text.split(";")[0].strip()
        parts = t.split(None, 1)
        op = parts[0]
        self.op = op
        rest = parts[1] if len(parts) > 1 else ""
        ops = [o.strip() for o in re.split(r",(?![^\[]*\])", rest)] if rest else []
        clean = []
        for o in ops:
            clean.append(o.split()[0] if o else o)
        mods = rest
        self.w, self.r = set(), set()
        self.srcc, self.ab, self.passes = set(), set(), 0
        base = re.sub(r"_e(32|64)$", "", op)
        E = lambda i: _expand(clean[i]) if i < len(clean) else []
        if op.startswith("v_mfma"):
            self.kind = "mfma"
            self.passes = 8 if "32x32x16" in op else 4
            self.w = set(E(0)); self.ab = set(E(1)) | set(E(2)); self.srcc = set(E(3))
            self.r = self.ab | self.srcc
        elif op.startswith("buffer_") or op.startswith("global_"):
            self.kind = "vmem"
            lds = bool(re.search(r"\blds\b", mods))
            if "store" in op or ("atomic" in op):
                for i in range(len(clean)): self.r |= set(E(i))
                if "atomic" in op and re.search(r"\bsc0\b", mods): self.w = set(E(0))
                if "store" in op: self.kind = "vstore"
            elif lds:
                for i in range(len(clean)): self.r |= set(E(i))
                self.r.add(("s", 124)); self.kind = "dma"
            else:
                self.w = set(E(0))
                for i in range(1, len(clean)): self.r |= set(E(i))
        elif op.startswith("ds_"):
            self.kind = "lds"
            if op.startswith("ds_read") or "_rtn" in op or "permute" in op or "swizzle" in op:
                self.w = set(E(0))
                for i in range(1, len(clean)): self.r |= set(E(i))
            else:
                for i in range(len(clean)): self.r |= set(E(i))
        elif op.startswith("v_"):
            self.kind = "valu"
            if base in TRANS: self.kind = "trans"
            if base.startswith("v_dot"): self.kind = "dot"
            self.w = set(E(0))
            st = 1
            if base in ("v_add_co_u32", "v_sub_co_u32", "v_addc_co_u32"):
                self.w |= set(E(1)); st = 2
            for i in range(st, len(clean)): self.r |= set(E(i))
            if base.startswith("v_permlane") and "swap" in base:
                self.w |= set(E(1)); self.r |= set(E(0)); self.kind = "perm"
            if base in ("v_fmac_f32", "v_dot2c_f32_bf16", "v_writelane_b32"): self.r |= set(E(0))
            if base == "v_cndmask_b32" and len(clean) == 3: self.r |= {("s", 106), ("s", 107)}
            if base in ("v_readfirstlane_b32", "v_readlane_b32"): self.kind = "rdlane"
            if self.kind == "dot": self.srcc = set(E(3)) if base == "v_dot2_f32_bf16" else set(E(0))
        elif op.startswith("s_"):
            self.kind = "salu"
            if op.startswith("s_cmp") or op.startswith("s_cbranch") or op in ("s_waitcnt", "s_barrier", "s_nop", "s_branch", "s_endpgm", "s_sleep", "s_setprio"):
                for i in range(len(clean)): self.r |= set(E(i))
            else:
                self.w = set(E(0))
                for i in range(1, len(clean)): self.r |= set(E(i))
        else:
            raise ValueError("unknown op " + text)
    def states(self):
        if self.op == "s_nop": return int(self.text.split()[1]) + 1
        return 1
    def isvalu(self):
        return self.kind in ("valu", "trans", "dot", "perm", "rdlane")

def isize(x):
    t = x.text
    if x.kind in ("mfma", "vmem", "vstore", "dma", "lds", "dot"): return 8
    if x.op.startswith("s_load") or x.op.startswith("s_mem"): return 8
    lit = False
    for m in re.finditer(r"(?<![\w\[:])(0x[0-9a-fA-F]+|\d+)(?![\w\]:.])", t.split(None, 1)[1] if " " in t else ""):
        v = int(m.group(1), 0)
        if v > 64: lit = True
    if x.kind == "salu":
        return 8 if (lit and not x.op.startswith(("s_waitcnt", "s_nop", "s_sleep"))) else 4
    v2 = ("v_mov_b32", "v_add_u32", "v_sub_u32", "v_subrev_u32", "v_and_b32", "v_or_b32", "v_xor_b32", "v_lshlrev_b32", "v_lshrrev_b32",
          "v_mul_u32_u24", "v_add_f32", "v_sub_f32", "v_mul_f32", "v_max_f32", "v_max_u32", "v_exp_f32", "v_rcp_f32", "v_rsq_f32", "v_sqrt_f32",
          "v_readfirstlane_b32", "v_permlane32_swap_b32")
    if x.op in v2: return 8 if lit else 4
    return 8

def vec(s): return {x for x in s if x[0] in "va"}
def sca(s): return {x for x in s if x[0] == "s"}

def need(p, c):
    n = 0
    pw, cr, cw = p.w, c.r, c.w
    if p.kind == "mfma":
        big = p.passes == 8
        if c.kind == "mfma":
            if pw & c.ab: n = max(n, 12 if big else 8)
            if pw & c.srcc:
                if not (pw == c.srcc and p.passes == c.passes): n = max(n, 10 if big else 6)
            elif pw & cw: n = max(n, 10 if big else 6)
        else:
            if (pw & cr) or (pw & cw): n = max(n, 12 if big else 8)
            if c.isvalu() and (p.srcc & cw): n = max(n, 7 if big else 3)
    if p.isvalu():
        if c.kind == "mfma" and (vec(pw) & cr): n = max(n, 2)
        if c.kind == "perm" and (vec(pw) & cr): n = max(n, 2)
        if c.kind == "rdlane" and (vec(pw) & cr): n = max(n, 1)
        if p.kind == "trans" and c.isvalu() and c.kind != "trans" and (pw & cr): n = max(n, 1)
        if p.kind == "trans" and c.kind == "trans" and (pw & cr): n = max(n, 1)
        if sca(pw):
            if c.isvalu() and (sca(pw) & cr): n = max(n, 4 if c.kind == "rdlane" or c.op.startswith("v_writelane") else 2)
            if c.kind in ("vmem", "vstore", "dma") and (sca(pw) & cr): n = max(n, 5)
            if c.kind == "salu" and (sca(pw) & cr): n = max(n, 1)
        if p.kind == "dot":
            if (pw & cr) or (pw & cw):
                same = c.kind == "dot" and re.sub(r"_e(32|64)$", "", c.op) == re.sub(r"_e(32|64)$", "", p.op)
                if same and (pw & c.srcc) and not (pw & (cr - c.srcc)): pass
                elif c.kind != "salu": n = max(n, 3)
        if "dpp" in c.text and (vec(pw) & cr): n = max(n, 2)
    if p.kind == "salu" and ("s", 124) in pw and c.kind == "dma": n = max(n, 1)
    if p.kind == "vstore" and ("x4" in p.op or "x3" in p.op) and (vec(p.r) & cw):
        n = max(n, 2)
    if p.kind == "lds" and ("b128" in p.op) and p.op.startswith("ds_write") and (vec(p.r) & cw) and c.isvalu():
        n = max(n, 2)
    return n

class Prog:
    def __init__(self):
        self.L = []
        self.vm_n = 0; self.vm_done = 0
        self.lg_n = 0; self.lg_done = 0
    def raw(self, s): self.L.append(s)
    def label(self, s): self.L.append(s + ":")
    def c(self, s): self.L.append("    ; " + s)
    def I(self, text):
        i = Inst(text)
        self.L.append(i)
        if i.kind in ("vmem", "vstore", "dma"):
            self.vm_n += 1; return self.vm_n
        if i.kind == "lds":
            self.lg_n += 1; return self.lg_n
        return None
    def __call__(self, text):
        r = None
        for ln in text.strip().split("\n"):
            ln = ln.strip()
            if not ln or ln.startswith(";"): continue
            if ln.endswith(":"): self.label(ln[:-1]); continue
            r = self.I(ln)
        return r
    def wait(self, vm=None, lg=None):
        parts = []
        if vm is not None and vm > self.vm_done:
            parts.append(f"vmcnt({min(63, self.vm_n - vm)})"); self.vm_done = max(vm, self.vm_n - 63 if self.vm_n - vm > 63 else vm)
        if lg is not None and lg > self.lg_done:
            parts.append(f"lgkmcnt({min(15, self.lg_n - lg)})"); self.lg_done = max(lg, self.lg_n - 15 if self.lg_n - lg > 15 else lg)
        if parts: self.I("s_waitcnt " + " ".join(parts))
    def wait_all(self, vm=False, lg=False, force=False):
        parts = []
        if vm and (force or self.vm_done < self.vm_n): parts.append("vmcnt(0)"); self.vm_done = self.vm_n
        if lg and (force or self.lg_done < self.lg_n): parts.append("lgkmcnt(0)"); self.lg_done = self.lg_n
        if parts: self.I("s_waitcnt " + " ".join(parts))
    def reset_counters(self):
        self.vm_n = self.vm_done = self.lg_n = self.lg_done = 0
    def text(self, pad_every=0, nseg=4):
        out = []; hist = []
        nnop = 0
        self.pads = []; acc = 0; armed = False
        for x in self.L:
            if isinstance(x, str):
                if x == "@PADS_ON": armed = True; continue
                if x == "@PADS_OFF": armed = False; continue
                out.append(x); continue
            acc += isize(x)
            if pad_every and armed and acc >= pad_every:
                acc = 0
                self.pads.append(len(out)); out.append(None)
                hist.append(Inst("s_cbranch_execz L"))
            req = 0; d = 0
            for p in reversed(hist[-24:]):
                n = need(p, x)
                if n > d: req = max(req, n - d)
                d += p.states()
                if d >= 20: break
            if req:
                nop = Inst(f"s_nop {req-1}")
                out.append("    " + nop.text); hist.append(nop); nnop += 1
            out.append("    " + x.text); hist.append(x)
        self.nnop = nnop
        n = len(self.pads)
        if pad_every:
            starts = [n * k // nseg for k in range(nseg)]
            for i, pos in enumerate(self.pads):
                nxt = "L_walk_done" if (i + 1 == n or (i + 1) in starts) else f"L_pad{i+1}"
                lab = f"L_pad{i}:"
                if i in starts: lab = f"L_walk{starts.index(i)}:\n" + lab
                out[pos] = f"{lab}\n    s_cbranch_execz {nxt}"
        return "\n".join(out)
```

```python
import sys, math, struct
from asmlib import Prog
KN = "recurrent_scan__sliding_block__dense_activation_silu__prompt"

QKV_T = 86016
HOFF, H_T = 0x600000, 114688
OOFF, O_T = 0xE00000, 32768
FLAGS = 0x1000000
PROF = 0x1100000
WS_BYTES = 0x1200000
XS, WQS, W1S, MISC = 0, 65536, 81920, 155648
W2A = 20480
KOFF, VOFF, QOFF = 0, 24576, 49152
W2R, W2W = 65536, 22528
ST_CSQ = MISC
ST_CS1 = MISC + 2048
ST_CNT = MISC + 6144
SX, SWQ, SWO, SW1, SW2, SOUT, SDBG, SWS = [f"s[{i}:{i+3}]" for i in range(8, 40, 4)]
sWAVE, sW, sXCD, sIDX, sRB, sCB, sMB, sNB, sHD, sRBA, sROT, sHELP = [f"s{i}" for i in range(40, 52)]
sP0, sODD = "s52", "s53"
sNON = "s[100:101]"
LOG2E = 1.4426950408889634
def fbits(x): return "0x%08x" % struct.unpack("<I", struct.pack("<f", x))[0]
def vr(a, n=4): return f"v[{a}:{a+n-1}]"
def MF(d, a, b, c): return f"v_mfma_f32_32x32x16_bf16 {vr(d,16)}, {vr(a)}, {vr(b)}, {'0' if c is None else vr(c,16)}"

class G:
    def __init__(self, prof=0, opt=None):
        self.p = Prog(); self.prof = prof; self.nlab = 0
        self.opt = opt or {}
    def lab(self, s):
        self.nlab += 1; return f"L_{s}_{self.nlab}"
    def stamp(self, k, fine=False):
        if not self.prof or (fine and self.prof < 2): return
        p = self.p
        p.wait_all(lg=True)
        p(f"s_memtime s[98:99]")
        p.I("s_waitcnt lgkmcnt(0)")
        p(f"v_writelane_b32 v255, s98, {k}")
    def stamp_flush(self):
        p = self.p
        p(f"""s_lshl_b32 s98, s2, 3
        s_add_u32 s98, s98, {sWAVE}
        s_lshl_b32 s98, s98, 8
        s_add_u32 s98, s98, {PROF}
        v_lshlrev_b32 v254, 2, v0
        buffer_store_dword v255, v254, {SWS}, s98 offen""")
    def barrier(self):
        self.p.wait_all(lg=True)
        self.p("s_barrier")

    def get_nonce(self, vt):
        p = self.p
        L0, L1 = self.lab("non"), self.lab("nok")
        p(f"s_mov_b32 s60, 0")
        p.label(L0)
        p(f"buffer_load_dwordx2 {vr(vt,2)}, off, {SDBG}, 0 sc1")
        p.wait_all(vm=True, force=True)
        p(f"""v_readfirstlane_b32 s100, v{vt}
        v_readfirstlane_b32 s101, v{vt+1}
        s_add_u32 s60, s60, 1
        s_cmp_lg_u32 s100, 0
        s_cbranch_scc1 {L1}
        s_sleep 8
        s_cmp_lt_u32 s60, 0x10000
        s_cbranch_scc1 {L0}""")
        p.label(L1)

    def poll_issue(self, voff, vt):
        return self.p(f"buffer_load_dwordx2 {vr(vt,2)}, v{voff}, {SWS}, 0 offen sc1")
    def poll_test(self, vt, mask):
        self.p(f"""v_cmp_ne_u64 vcc, {sNON}, {vr(vt,2)}
        s_nop 1
        s_and_b64 vcc, vcc, {mask}""")
    def poll(self, voff, vt, mask, sleep=4, first=None):
        p = self.p
        L0, L1 = self.lab("poll"), self.lab("pok")
        p(f"s_mov_b32 s60, 0")
        if first is not None:
            p.wait(vm=first)
            self.poll_test(vt, mask)
            p(f"s_cbranch_scc0 {L1}")
        n0, d0 = p.vm_n, p.vm_done
        p.label(L0)
        self.poll_issue(voff, vt)
        p.wait_all(vm=True, force=True)
        p(f"s_add_u32 s60, s60, 1")
        self.poll_test(vt, mask)
        p(f"""s_cbranch_scc0 {L1}
        s_sleep {sleep}
        s_cmp_lt_u32 s60, 0x10000
        s_cbranch_scc1 {L0}""")
        p.label(L1)
        if first is not None:
            p.vm_n, p.vm_done = n0, d0

    def signal(self, which, srow, scol, vt):
        p = self.p
        p(f"""s_lshl_b32 s60, {srow}, 2
        s_add_u32 s60, s60, {sW}
        s_lshl_b32 s60, s60, 7
        s_lshl_b32 s61, {scol}, 3
        s_add_u32 s60, s60, s61
        s_add_u32 s60, s60, {FLAGS + 8192*which}
        v_mov_b32 v{vt}, s100
        v_mov_b32 v{vt+1}, s101
        s_mov_b64 exec, 1""")
        p.wait_all(vm=True, force=True)
        p(f"""buffer_store_dwordx2 {vr(vt,2)}, off, {SWS}, s60 sc1
        s_mov_b64 exec, -1""")

    def prologue(self):
        p = self.p
        p(f"""s_load_dwordx2 s[8:9], s[0:1], 0
        s_load_dwordx2 s[12:13], s[0:1], 8
        s_load_dwordx2 s[16:17], s[0:1], 16
        s_load_dwordx2 s[20:21], s[0:1], 32
        s_load_dwordx2 s[24:25], s[0:1], 40
        s_load_dwordx2 s[28:29], s[0:1], 48
        s_load_dwordx2 s[32:33], s[0:1], 56
        s_load_dwordx2 s[36:37], s[0:1], 64""")
        if self.prof:
            p("s_memtime s[96:97]")
            p("s_memrealtime s[94:95]")
        p(f"""s_mov_b32 s11, 0x00020000
        s_cmp_ge_u32 s2, 32
        s_cbranch_scc1 L_nopf
        s_getpc_b64 s[4:5]
        s_mov_b32 s6, CODE_BYTES
        s_mov_b32 s7, s11
        v_lshlrev_b32 v1, 7, v0
        buffer_load_dword v2, v1, s[4:7], 0 offen
        L_nopf:
        v_lshrrev_b32 v1, 6, v0
        s_cmp_ge_u32 s2, 256
        s_cbranch_scc1 L_end
        s_and_b32 {sXCD}, s2, 7
        s_lshr_b32 {sIDX}, s2, 3
        v_readfirstlane_b32 {sWAVE}, v1
        v_and_b32 v0, 63, v0
        s_cmp_lt_u32 {sIDX}, 4
        s_cselect_b32 {sHELP}, 1, 0
        s_max_u32 s54, {sIDX}, 4
        s_sub_u32 s54, s54, 4
        s_mul_i32 s55, s54, 37
        s_lshr_b32 s55, s55, 8
        s_mul_i32 s56, s55, 7
        s_sub_u32 {sNB}, s54, s56
        s_lshl_b32 {sMB}, {sXCD}, 2
        s_add_u32 {sMB}, {sMB}, s55
        s_lshr_b32 {sRB}, {sXCD}, 1
        s_lshl_b32 {sRB}, {sRB}, 2
        s_add_u32 {sRB}, {sRB}, s55
        s_and_b32 {sCB}, {sXCD}, 1
        s_mul_i32 {sCB}, {sCB}, 7
        s_add_u32 {sCB}, {sCB}, {sNB}
        s_and_b32 {sW}, {sWAVE}, 3
        s_mov_b32 s10, 1835008
        s_mov_b32 s14, 1204224
        s_mov_b32 s15, s11
        s_cmp_lt_u32 {sWAVE}, 4
        s_cbranch_scc1 L_roleA""")

    def prologue2(self):
        p = self.p
        p(f"""s_and_b32 {sODD}, {sIDX}, 1
        s_lshl_b32 {sHD}, {sXCD}, 1
        s_add_u32 {sHD}, {sHD}, {sODD}
        s_lshr_b32 {sRBA}, {sIDX}, 1
        s_mul_i32 {sP0}, {sHD}, 7
        s_lshr_b32 {sP0}, {sP0}, 1
        s_mov_b32 s18, 401408
        s_mov_b32 s19, 0x00020000
        s_mov_b32 s22, 1605632
        s_mov_b32 s23, 0x00020000
        s_mov_b32 s26, 1605632
        s_mov_b32 s27, 0x00020000
        s_mov_b32 s30, 1835008
        s_mov_b32 s31, 0x00020000
        s_mov_b32 s34, 256
        s_mov_b32 s35, 0x00020000
        s_mov_b32 s38, {WS_BYTES}
        s_mov_b32 s39, 0x00020000""")
        if self.prof:
            p("v_mov_b32 v255, 0")
            p("s_waitcnt lgkmcnt(0)")
            p("v_writelane_b32 v255, s96, 0")
            p("v_writelane_b32 v255, s94, 62")

    def trlane(self, d):
        self.p(f"""v_lshrrev_b32 v{d}, 5, v0
        v_lshlrev_b32 v{d}, 3, v{d}
        v_bfe_u32 v{d+2}, v0, 2, 2
        v_add_u32 v{d}, v{d}, v{d+2}
        v_bfe_u32 v{d+1}, v0, 4, 1
        v_lshlrev_b32 v{d+1}, 5, v{d+1}
        v_and_b32 v{d+3}, 1, v0
        v_lshl_or_b32 v{d+1}, v{d+3}, 4, v{d+1}
        v_bfe_u32 v{d+3}, v0, 1, 1
        v_lshl_or_b32 v{d+1}, v{d+3}, 3, v{d+1}""")

    def w128_lane(self, VD, AD, T, base_s):
        p = self.p
        p(f"""v_lshrrev_b32 v{T}, 3, v0
        v_mul_u32_u24 v{T}, 896, v{T}
        v_and_b32 v{T+1}, 7, v0
        v_bfe_u32 v{T+2}, v0, 4, 1
        v_lshlrev_b32 v{T+2}, 2, v{T+2}
        v_xor_b32 v{T+1}, v{T+1}, v{T+2}
        v_lshl_add_u32 v{VD}, v{T+1}, 4, v{T}""")
        for i in range(1, 4):
            p(f"v_add_u32 v{VD+i}, {i*(8*896-1024)}, v{VD}")
        self.trlane(T)
        p(f"""v_lshlrev_b32 v{AD}, 7, v{T}
        v_add_u32 v{AD}, v{AD}, v{T+1}
        v_lshrrev_b32 v{T+2}, 1, v{T+2}
        v_lshl_or_b32 v{AD}, v{T+2}, 6, v{AD}
        v_add_u32 v{AD}, {base_s}, v{AD}
        v_xor_b32 v{AD+1}, 64, v{AD}""")

    def part_addr(self, base_s, T):
        p = self.p
        p(f"""v_and_b32 v{T}, 31, v0
        v_lshrrev_b32 v{T+1}, 5, v0
        v_lshlrev_b32 v{T+2}, 1, v{T+1}
        v_xor_b32 v{T}, v{T}, v{T+2}
        v_lshlrev_b32 v{T}, 4, v{T}
        v_lshl_or_b32 v{T}, v{T+1}, 10, v{T}
        v_add_u32 v{T}, {base_s}, v{T}
        v_xor_b32 v{T+1}, 64, v{T}
        v_xor_b32 v{T+2}, 0x80, v{T}
        v_xor_b32 v{T+3}, 0xc0, v{T}""")
    def write_partials(self, ACC, T):
        p = self.p
        for a in range(2):
            for t in range(2):
                for u in range(2):
                    for e in range(2):
                        r = ACC + 16 * (2 * a + t) + 8 * u + 4 * e
                        p(f"ds_write_b128 v{T+2*t+u}, {vr(r)} offset:{e*8192 + (4*t+2*u)*1024 + a*512}")

    def xload(self):
        self.p(f"""s_lshl_b32 s60, {sMB}, 3
        s_add_u32 s60, s60, {sWAVE}
        s_mul_i32 s60, s60, {8*896}
        s_lshl_b32 s61, {sNB}, 7
        s_add_u32 s60, s60, s61
        v_lshrrev_b32 v244, 3, v0
        v_mul_u32_u24 v244, 896, v244
        v_and_b32 v245, 7, v0
        v_lshl_add_u32 v244, v245, 4, v244
        v_add_u32 v244, s60, v244
        buffer_load_dwordx4 v[240:243], v244, {SX}, 0 offen""")

    def helper_prefetch(self, T):
        p = self.p
        if not self.opt.get("hpf", 2): return
        p(f"""s_lshl_b32 s54, s2, 3
        s_add_u32 s54, s54, {sWAVE}
        v_lshlrev_b32 v{T}, 7, v0
        s_mul_i32 s55, s54, 6272
        s_mul_i32 s56, s54, 1568
        s_and_b32 s56, s56, 0xffffff80
        s_waitcnt vmcnt(0)
        s_bfm_b64 exec, 49, 0
        buffer_load_dword v{T+1}, v{T}, {SW1}, s55 offen
        buffer_load_dword v{T+2}, v{T}, {SW2}, s55 offen
        s_mov_b64 exec, 0x1fff
        buffer_load_dword v{T+3}, v{T}, {SWO}, s56 offen
        s_mov_b64 exec, -1""")
        if self.opt.get("hpf", 2) >= 2:
            Lp = self.lab("pf")
            p(f"""s_lshl_b32 s54, {sIDX}, 3
            s_add_u32 s54, s54, {sWAVE}
            s_and_b32 s55, s54, 3
            s_mul_i32 s55, s55, {448*896}
            s_lshr_b32 s56, s54, 2
            s_mul_i32 s56, s56, 7168
            s_add_u32 s55, s55, s56
            s_mov_b32 s57, 0
            s_waitcnt vmcnt(0)
            s_bfm_b64 exec, 56, 0""")
            p.label(Lp)
            p(f"""buffer_load_dword v{T+1}, v{T}, {SW2}, s55 offen
            s_add_u32 s55, s55, {8*7168}
            s_add_u32 s57, s57, 1
            s_cmp_lt_u32 s57, 7
            s_cbranch_scc1 {Lp}
            s_mov_b64 exec, -1
            s_mul_i32 s55, s54, 12544
            buffer_load_dword v{T+1}, v{T}, {SWO}, s55 offen
            s_add_u32 s55, s55, 4352
            buffer_load_dword v{T+1}, v{T}, {SWO}, s55 offen""")

    def roleB(self):
        p = self.p
        p.reset_counters()
        WF = 8
        ACC = 152
        VX, VQ, V1 = 152, 156, 160
        AQ, A1, CW = 164, 165, 166
        FB = 168
        CS = 200
        SEL = 208
        PV, PT = 204, 206
        T = 216
        VD, AD = 246, 250
        p(f"""s_cmp_eq_u32 {sHELP}, 1
        s_cbranch_scc1 L_B_help
        s_lshl_b32 s59, {sRB}, 1
        s_add_u32 s59, s59, {sCB}
        s_mul_i32 s55, s59, 37
        s_lshr_b32 s55, s55, 8
        s_mul_i32 s55, s55, 7
        s_sub_u32 s59, s59, s55
        {'s_mov_b32 s59, 0' if self.opt.get('norot') else ''}
        s_lshl_b32 s54, {sRB}, 2
        s_add_u32 s54, s54, {sW}
        s_mul_i32 s54, s54, {32*896}
        v_lshrrev_b32 v{T}, 3, v0
        v_mul_u32_u24 v{T}, 896, v{T}
        v_add_u32 v{T}, s54, v{T}
        v_and_b32 v{T+1}, 7, v0
        v_lshrrev_b32 v{T+2}, 4, v0
        v_xor_b32 v{T+1}, v{T+1}, v{T+2}
        v_lshl_add_u32 v{VX}, v{T+1}, 4, v{T}
        v_xor_b32 v{VX+1}, 64, v{VX}
        v_add_u32 v{VX+2}, {2*(8*896-1024)}, v{VX}
        v_add_u32 v{VX+3}, {3*(8*896-1024)}, v{VX+1}
        v_add_u32 v{VX+1}, {8*896-1024}, v{VX+1}
        s_lshl_b32 s56, {sW}, 12""")
        def nextc(s):
            p(f"""s_add_u32 {s}, {s}, 1
            s_cmp_eq_u32 {s}, 7
            s_cselect_b32 {s}, 0, {s}""")
        tok = {}
        def grp(pre, ins, post=None, key=None):
            out = []
            for n, x in enumerate(ins):
                def f(n=n, x=x):
                    if n == 0: pre()
                    t0 = p(x)
                    if n == len(ins) - 1:
                        if post: post()
                        if key is not None: tok[key] = t0
                out.append(f)
            return out
        def dma_x(c):
            def pre():
                p(f"""s_add_u32 m0, s56, {XS + (c%4)*16384}
                s_lshl_b32 s62, s59, 7""")
                if c == 0:
                    if self.prof: p("s_memtime s[70:71]")
                    p("s_waitcnt lgkmcnt(0)")
                    if self.prof: p("s_memtime s[72:73]")
            return grp(pre, [f"buffer_load_dwordx4 v{VX+i}, {SX}, s62 offen offset:{1024*i} lds" for i in range(4)])
        def dma_w(c):
            pre = lambda: p(f"""s_add_u32 m0, s57, {(c%4)*12288}
            s_mul_i32 s62, s59, {64*2688}""")
            return grp(pre, [f"buffer_load_dwordx4 v{VQ+i}, {SWQ}, s62 offen offset:{1024*i} lds" for i in range(3)],
                       lambda: nextc("s59"), ("q", c))
        def dma_1(u):
            out = []
            for hc in (2 * u, 2 * u + 1):
                def pre(hc=hc):
                    p(f"""s_add_u32 m0, s58, {((hc+4)%8)*8192}
                    s_mul_i32 s62, s59, {64*3584}""")
                    if hc >= 7: p("s_add_u32 s62, s62, 128")
                out += grp(pre, [f"buffer_load_dwordx4 v{V1+i}, {SW1}, s62 offen offset:{1024*i} lds" for i in range(2)],
                           lambda: nextc("s59"), ("1", u))
            return out
        def dma_2(n, slot0, key=None):
            out = []; k = 0
            while k < n:
                m = min(2, n - k)
                out += grp(lambda k=k: p(f"s_add_u32 m0, s55, {(slot0+k)*2048}"),
                           [f"buffer_load_dwordx4 v{VD+i}, {SW2}, s87 offen offset:{1024*i} lds" for i in range(2 * m)],
                           lambda m=m: p(f"s_add_u32 s87, s87, {16*m*896}"), key)
                k += m
            return out
        def run(l):
            for f in l: f()
        def weave(dm, work):
            n, m = len(dm), len(work); d = 0
            for i, f in enumerate(work):
                while d < n and d * m <= i * n:
                    dm[d](); d += 1
                f()
            run(dm[d:])
        run(dma_x(0))
        p(f"""s_mul_i32 s54, {sW}, {16*2688}
        s_mul_i32 s55, {sCB}, 192
        s_add_u32 s54, s54, s55
        s_mul_i32 s57, {sW}, 3072
        s_add_u32 s57, s57, {WQS}""")
        for i in range(3):
            p(f"""v_add_u32 v{T}, {64*i}, v0
            v_mul_u32_u24 v{T+1}, 5462, v{T}
            v_lshrrev_b32 v{T+1}, 16, v{T+1}
            v_mul_u32_u24 v{T+1}, {2688-192}, v{T+1}
            v_lshl_add_u32 v{T+1}, v0, 4, v{T+1}
            v_add_u32 v{VQ+i}, s54, v{T+1}""")
        run(dma_w(0))
        if self.prof: p("s_memtime s[74:75]")
        self.prologue2()
        if self.prof:
            p("v_writelane_b32 v255, s70, 40")
            p("v_writelane_b32 v255, s72, 41")
            p("v_writelane_b32 v255, s74, 42")
        p(f"""v_mov_b32 v{T}, {ST_CNT}
        v_mov_b32 v{T+1}, 0
        ds_write_b32 v{T}, v{T+1}
        s_lshl_b32 s58, {sW}, 11
        s_add_u32 s58, s58, {W1S}
        s_mul_i32 s54, {sW}, {16*3584}
        s_lshl_b32 s55, {sCB}, 8
        s_add_u32 s54, s54, s55
        v_lshrrev_b32 v{T}, 3, v0
        v_mul_u32_u24 v{T}, 3584, v{T}
        v_and_b32 v{T+1}, 7, v0
        v_bfe_u32 v{T+2}, v0, 4, 1
        v_lshlrev_b32 v{T+2}, 2, v{T+2}
        v_xor_b32 v{T+1}, v{T+1}, v{T+2}
        v_lshl_add_u32 v{T}, v{T+1}, 4, v{T}
        v_add_u32 v{V1}, s54, v{T}
        v_add_u32 v{V1+1}, {8*3584-1024}, v{V1}""")
        self.trlane(T)
        p(f"""s_min_u32 s54, {sW}, 2
        s_lshl_b32 s54, s54, 6
        s_add_u32 s54, s54, {WQS}
        v_mul_u32_u24 v{AQ}, 192, v{T}
        v_add_u32 v{AQ}, v{AQ}, v{T+1}
        v_add_u32 v{AQ}, s54, v{AQ}
        v_lshlrev_b32 v{A1}, 7, v{T}
        v_add_u32 v{A1}, v{A1}, v{T+1}
        v_lshrrev_b32 v{T+2}, 1, v{T+2}
        s_and_b32 s54, {sW}, 1
        v_xor_b32 v{T+2}, s54, v{T+2}
        v_lshl_or_b32 v{A1}, v{T+2}, 6, v{A1}
        s_lshr_b32 s54, {sW}, 1
        s_lshl_b32 s54, s54, 12
        s_add_u32 s54, s54, {W1S}
        v_add_u32 v{A1}, s54, v{A1}
        s_lshl_b32 s54, {sW}, 9
        s_add_u32 s54, s54, {ST_CSQ}
        v_lshlrev_b32 v{CW}, 3, v0
        v_add_u32 v{CW}, s54, v{CW}
        s_and_b32 s54, {sW}, 1
        s_lshl_b32 s54, s54, 10
        s_lshr_b32 s60, {sW}, 1
        s_lshl_b32 s60, s60, 3
        s_add_u32 s54, s54, s60
        s_add_u32 s54, s54, {ST_CS1}
        v_lshlrev_b32 v{CW+1}, 4, v0
        v_add_u32 v{CW+1}, s54, v{CW+1}
        s_mul_i32 s87, {sW}, {448*896}
        s_lshl_b32 s54, {sNB}, 7
        s_add_u32 s87, s87, s54
        s_mul_i32 s55, {sW}, {W2A}""")
        self.w128_lane(VD, AD, T, "s55")
        self.kv_setup(PV, T)
        if self.opt.get("bprio", 0): p(f"s_setprio {self.opt['bprio']}")
        p(f"""v_lshrrev_b32 v{T}, 2, v0
        v_lshrrev_b32 v{T+1}, 4, v0
        v_xor_b32 v{T}, v{T}, v{T+1}
        v_and_b32 v{T}, 1, v{T}
        v_cmp_eq_u32 vcc, 0, v{T}
        v_mov_b32 v{T+1}, 0x3f803f80
        v_cndmask_b32 v{SEL}, 0, v{T+1}, vcc
        v_cmp_gt_u32 s[78:79], 32, v0
        v_mov_b32 v{SEL+1}, v{SEL}
        v_mov_b32 v{SEL+2}, v{SEL}
        v_mov_b32 v{SEL+3}, v{SEL}""")
        first = {"f": True}
        def colsum(addr, offs):
            w = []; tk = {}
            if self.opt.get("nocs"): return [lambda: None]
            for s, (off, rowb) in enumerate(offs):
                def f(s=s, off=off, rowb=rowb):
                    for jj in range(2):
                        tk[s] = p(f"ds_read_b64_tr_b16 {vr(FB+4*s+2*jj,2)}, v{addr} offset:{off + 4*jj*rowb}")
                w.append(f)
            def g():
                for s in range(len(offs)):
                    p.wait(lg=tk[s])
                    p(f"v_mfma_f32_16x16x32_bf16 {vr(CS)}, {vr(SEL)}, {vr(FB+4*s)}, {'0' if first['f'] else vr(CS)}")
                    first["f"] = False
            w.append(g)
            return w
        def csfrag(addr, off):
            p(f"""v_cndmask_b32 v{CS}, 0, v{CS}, s[78:79]
            v_cvt_pk_bf16_f32 v{T+8}, v{CS}, v{CS}
            v_and_b32 v{T+9}, 0xffff0000, v{T+8}
            v_sub_f32 v{T+9}, v{CS}, v{T+9}
            v_cvt_pk_bf16_f32 v{T+9}, v{T+9}, v{T+9}
            ds_write_b64 v{addr}, {vr(T+8,2)} offset:{off}""")
            first["f"] = True
        def frag2(dst, slot):
            for t in range(2):
                for jj in range(2):
                    t0 = p(f"ds_read_b64_tr_b16 {vr(dst+4*t+2*jj,2)}, v{AD+t} offset:{slot*2048 + jj*512}")
            return t0
        self.stamp(43)
        run(dma_x(1) + dma_w(1))
        for c in range(7):
            p.wait(vm=tok["q", c])
            self.stamp(1 + c, c > 0)
            self.barrier()
            dm = dma_x(c + 2) + dma_w(c + 2) if c < 5 else dma_1(c - 5)
            weave(dm, colsum(AQ, [((c % 4) * 12288 + 16 * s_ * 192, 192) for s_ in range(4)]))
        csfrag(CW, 0)
        NR1 = 10
        hco = lambda hc: [(((hc + 4) % 8) * 8192 + 2048 * s_, 128) for s_ in range(2)]
        for c in range(7):
            p.wait(vm=tok["1", c])
            self.stamp(9 + c, c > 0)
            self.barrier()
            dm = dma_1(c + 2) if c < 5 else []
            if c == 0:
                p(f"""v_mov_b32 v{T+12}, {ST_CNT+16}
                ds_read_b64 {vr(T+12,2)}, v{T+12}""")
                dm += dma_2(2, 0)
            if c in (1, 2): dm += dma_2(1, 1 + c, "b0")
            if c == 3:
                weave(dm[:2], colsum(A1, hco(6)))
                csfrag(CW + 1, 0)
                self.barrier()
                weave(dm[2:] + dma_2(6, 4, "b1"), colsum(A1, hco(7)))
                p(f"""v_readfirstlane_b32 s100, v{T+12}
                v_readfirstlane_b32 s101, v{T+13}""")
            elif c == 4:
                p.wait(vm=tok["b0"])
                for k in range(4): frag2(WF + 8 * k, k)
                weave(dm, colsum(A1, hco(8) + hco(9)))
            elif c == 5:
                tpoll = self.poll_issue(PV, PT)
                run(colsum(A1, hco(10) + hco(11)))
                p.wait(vm=tok["b1"])
                for k in range(4, 10): frag2(WF + 8 * k, k)
            elif c == 6:
                p.wait(vm=tpoll)
                self.poll_test(PT, "s[92:93]")
                p(f"s_cbranch_scc1 L_B_kvlate")
                st0 = (p.vm_n, p.vm_done, p.lg_n, p.lg_done)
                kv = self.kv_dma()
                weave(kv[:6], colsum(A1, hco(12) + hco(13)))
                csfrag(CW + 1, 2048)
                self.stamp(17)
                self.barrier()
                self.stamp(18)
                run(kv[6:])
                p("s_branch L_B_kvdone")
                p.label("L_B_kvlate")
                p.vm_n, p.vm_done, p.lg_n, p.lg_done = st0
                first["f"] = False
                run(colsum(A1, hco(12) + hco(13)))
                csfrag(CW + 1, 2048)
                self.stamp(16)
                self.barrier()
                p("s_branch L_B_kv")
            else:
                weave(dm, colsum(A1, hco(2 * c) + hco(2 * c + 1)))
            if c == 0: pass
        p.label("L_B_help")
        self.prologue2()
        p(f"""v_mov_b32 v{T}, {ST_CNT}
        v_mov_b32 v{T+1}, 0
        ds_write_b32 v{T}, v{T+1}
        s_waitcnt lgkmcnt(0)""")
        self.helper_prefetch(T)
        self.kv_setup(PV, T + 4)
        self.get_nonce(T + 4)
        p.label("L_B_kv")
        self.poll(PV, PT, "s[92:93]", 8)
        run(self.kv_dma())
        p.label("L_B_kvdone")
        if self.opt.get("padb", 1): p.raw("@PADS_ON")
        self.stamp(19)
        self.kv_fix(T)
        self.stamp(20)
        self.barrier()
        p(f"""s_cmp_eq_u32 {sHELP}, 1
        s_cbranch_scc1 L_fin
        s_mul_i32 s54, {sW}, {W2W - W2A}
        s_add_u32 s54, s54, {W2R}
        v_add_u32 v{AD}, s54, v{AD}
        v_add_u32 v{AD+1}, s54, v{AD+1}
        s_add_u32 s55, s55, s54""")
        run(dma_2(4, 0, "c0") + dma_2(4, 4, "c1") + dma_2(3, 8))
        HA = 252
        p(f"""v_and_b32 v{T}, 31, v0
        v_lshlrev_b32 v{T}, 3, v{T}
        s_lshl_b32 s54, {sMB}, 8
        s_add_u32 s54, s54, {FLAGS + 8192}
        v_add_u32 v{T}, s54, v{T}
        v_lshlrev_b32 v{HA}, 4, v0
        v_add_u32 v{HA+1}, {H_T}, v{HA}
        s_mul_i32 s56, {sMB}, {2*H_T}
        s_mul_i32 s58, {sW}, {28*1024}
        s_add_u32 s56, s56, s58
        s_add_u32 s56, s56, {HOFF}
        s_mul_i32 s54, {sW}, 7
        s_lshr_b32 s54, s54, 1
        s_lshl_b32 s58, 0x000f000f, s54
        s_mov_b32 s59, 0""")
        self.part_addr("s55", 4)
        p.wait(vm=tok["c0"])
        for k in range(4): frag2(WF + 8 * (NR1 + k), k)
        p.wait_all(lg=True)
        run(dma_2(4, 0))
        p.wait(vm=tok["c1"])
        for k in range(4, 8): frag2(WF + 8 * (NR1 + k), k)
        p.wait_all(lg=True)
        run(dma_2(3, 4))
        slot_of = {18: 8, 19: 9, 20: 10}
        for k in range(21, 28): slot_of[k] = k - 21
        self.xload()
        self.stamp(21)
        self.poll(T, T + 2, "s[58:59]")
        self.stamp(22)
        free = [216, 224, 232]
        hb = {}; th = {}
        st = {"n": 0}
        def issue_h():
            k = st["n"]
            b = free.pop(0); hb[k] = b
            for a in range(2):
                th[k] = p(f"buffer_load_dwordx4 {vr(b+4*a)}, v{HA+a}, {SWS}, s56 offen offset:{1024*(k&3)} sc1")
            if k & 3 == 3: p(f"s_add_u32 s56, s56, 4096")
            st["n"] += 1
        DEPTH = 5
        wfr = {k: WF + 8 * k for k in range(18)}
        tfr = {}
        while free and st["n"] < 28: issue_h()
        for k in range(28):
            kk = k + 8
            if 18 <= kk < 28:
                b = free.pop(); wfr[kk] = b
                tfr[kk] = frag2(b, slot_of[kk])
            p.wait(vm=th[k], lg=tfr.get(k))
            for a in range(2):
                for t in range(2):
                    c = ACC + 16 * (2 * a + t)
                    p(MF(c, wfr[k] + 4 * t, hb[k] + 4 * a, None if k == 0 else c))
            free.append(hb[k]); free.append(wfr[k])
            while st["n"] < 28 and st["n"] - k - 1 < DEPTH and free: issue_h()
        self.stamp(23)
        self.write_partials(ACC, 4)
        self.stamp(24)
        p("s_branch L_final")

    def kv_setup(self, PV, T):
        p = self.p
        p(f"""s_mov_b32 s92, 0
        s_mov_b32 s93, 0""")
        for add, reg in ((56, "s92"), (59, "s92"), (112, "s92"), (115, "s92"), (0, "s93"), (3, "s93")):
            p(f"""s_add_u32 s54, {sP0}, {add}
            s_mul_i32 s54, s54, 5462
            s_lshr_b32 s54, s54, 16
            s_bitset1_b32 {reg}, s54""")
        p(f"""s_lshl_b32 s93, s93, 16
        s_or_b32 s93, s93, s92
        s_mul_i32 s92, s92, 0x10001
        s_lshl_b32 s54, {sRBA}, 2
        s_mul_i32 s90, {sW}, 3
        s_add_u32 s90, s90, s54
        s_add_u32 s91, s54, {sW}
        v_lshrrev_b32 v{T}, 4, v0
        v_add_u32 v{T+1}, s90, v{T}
        v_max_u32 v{T+1}, 8, v{T+1}
        v_subrev_u32 v{T+1}, 8, v{T+1}
        v_mov_b32 v{T+2}, s91
        v_cmp_eq_u32 vcc, 3, v{T}
        v_cndmask_b32 v{T+1}, v{T+1}, v{T+2}, vcc
        v_and_b32 v{T}, 15, v0
        v_lshlrev_b32 v{T}, 3, v{T}
        v_lshl_add_u32 v{T}, v{T+1}, 7, v{T}
        v_add_u32 v{PV}, {FLAGS}, v{T}
        v_lshlrev_b32 v{PV+1}, 4, v0
        s_lshl_b32 s54, {sP0}, 9
        s_mul_i32 s89, {sW}, 6144
        s_lshl_b32 s88, {sW}, 11""")
        for i in range(3):
            p(f"""s_add_u32 s60, s90, {i}
            s_max_u32 s60, s60, 8
            s_sub_u32 s60, s60, 8
            s_mul_i32 s60, s60, {QKV_T}
            s_add_u32 s60, s60, s54
            s_add_u32 s{80+2*i}, s60, {56*512}
            s_add_u32 s{81+2*i}, s60, {112*512}""")
        p(f"""s_mul_i32 s86, s91, {QKV_T}
        s_add_u32 s86, s86, s54""")
        self.PVL = PV + 1
    def kv_dma(self):
        p = self.p
        out = []
        def two(m0, so):
            out.append(lambda: p(f"""s_add_u32 m0, {m0}
            buffer_load_dwordx4 v{self.PVL}, {SWS}, {so} offen offset:0 sc1 lds"""))
            out.append(lambda: p(f"buffer_load_dwordx4 v{self.PVL}, {SWS}, {so} offen offset:1024 sc1 lds"))
        two(f"s88, {QOFF}", "s86")
        for off, b in ((KOFF, 80), (VOFF, 81)):
            for i in range(3): two(f"s89, {off + 2048*i}", f"s{b+2*i}")
        return out
    def kv_fix(self, T):
        p = self.p
        p(f"""s_cmp_eq_u32 {sODD}, 1
        s_cselect_b32 s60, 0, 3
        s_cselect_b32 s62, 0, {3*512+8}
        s_add_u32 s60, s60, {sP0}
        s_and_b32 s60, s60, 3
        s_lshl_b32 s60, s60, 6
        v_and_b32 v{T+4}, 31, v0
        v_lshlrev_b32 v{T+4}, 4, v{T+4}
        v_xor_b32 v{T+4}, s60, v{T+4}
        v_add_u32 v{T+4}, s62, v{T+4}
        v_add_u32 v{T+5}, s88, v{T+4}
        v_lshrrev_b32 v{T+6}, 5, v0
        v_mul_u32_u24 v{T+6}, {VOFF}, v{T+6}
        v_add_u32 v{T+4}, v{T+4}, v{T+6}
        v_add_u32 v{T+4}, s89, v{T+4}
        v_mov_b32 v{T+8}, 0x3f80
        v_mov_b32 v{T+9}, 0
        v_mov_b32 v{T+11}, 0
        v_mov_b32 v{T+13}, 0
        v_mov_b32 v{T+15}, 0
        v_cmp_lt_u32 vcc, 31, v0""")
        for i in range(3):
            p(f"""s_add_u32 s60, s90, {i}
            s_cmp_lt_u32 s60, 8
            s_cselect_b32 s60, 0xf14a, 0
            v_mov_b32 v{T+10+2*i}, s60
            v_cndmask_b32 v{T+10+2*i}, v{T+10+2*i}, v{T+8}, vcc""")
        p.wait_all(vm=True, force=True)
        for i in range(3):
            p(f"ds_write_b64 v{T+4}, {vr(T+10+2*i,2)} offset:{2048*i}")
        p(f"ds_write_b64 v{T+5}, {vr(T+8,2)} offset:{QOFF}")

    def roleA(self):
        p = self.p
        p.raw("@PADS_OFF")
        p.label("L_roleA")
        p.reset_counters()
        XF = 8
        ACC = 120
        WB = 184
        AX = 216
        AQ = 220
        A1 = 221
        T = 228
        SUM, SQ = 2, 4
        p("s_memrealtime s[60:61]")
        self.prologue2()
        p(f"""s_or_b32 s62, s2, {sWAVE}
        s_waitcnt lgkmcnt(0)
        s_cmp_lg_u32 s62, 0
        s_cbranch_scc1 L_A_notag
        s_or_b32 s60, s60, 1
        v_mov_b32 v{T}, s60
        v_mov_b32 v{T+1}, s61
        v_mov_b32 v{T+2}, 0
        v_mov_b32 v{T+3}, 0
        s_mov_b64 exec, 1
        buffer_atomic_cmpswap_x2 {vr(T)}, off, {SDBG}, 0 sc1
        s_mov_b64 exec, -1
        L_A_notag:
        s_cmp_eq_u32 {sHELP}, 0
        s_cbranch_scc1 L_A_nohp""")
        self.helper_prefetch(T + 8)
        p.label("L_A_nohp")
        if self.opt.get("pad", 512):
            p(f"""s_mov_b64 exec, 0
            s_cmp_eq_u32 {sW}, 1
            s_cbranch_scc1 L_walk1
            s_cmp_eq_u32 {sW}, 2
            s_cbranch_scc1 L_walk2
            s_cmp_eq_u32 {sW}, 3
            s_cbranch_scc1 L_walk3
            s_branch L_walk0
            L_walk_done:
            s_mov_b64 exec, -1""")
        self.stamp(44)
        self.attn_setup()
        p(f"""s_cmp_eq_u32 {sHELP}, 0
        s_cbranch_scc1 L_A_work""")
        self.get_nonce(T + 4)
        p("s_branch L_A_attn")
        p.label("L_A_work")
        p.reset_counters()
        p(f"""v_and_b32 v{T}, 31, v0
        v_lshrrev_b32 v{T+1}, 5, v0
        v_bfe_u32 v{T+2}, v0, 1, 3
        v_xor_b32 v{T+1}, v{T+1}, v{T+2}
        v_lshlrev_b32 v{T+1}, 4, v{T+1}
        v_lshl_or_b32 v{AX}, v{T}, 7, v{T+1}
        s_lshl_b32 s54, {sW}, 12
        v_add_u32 v{AX}, s54, v{AX}
        v_xor_b32 v{AX+1}, 32, v{AX}
        v_xor_b32 v{AX+2}, 64, v{AX}
        v_xor_b32 v{AX+3}, 0x60, v{AX}""")
        self.trlane(T)
        p(f"""v_mul_u32_u24 v{AQ}, 192, v{T}
        v_add_u32 v{AQ}, v{AQ}, v{T+1}
        v_add_u32 v{AQ}, {WQS}, v{AQ}
        v_lshlrev_b32 v{A1}, 7, v{T}
        v_add_u32 v{A1}, v{A1}, v{T+1}
        v_lshrrev_b32 v{T+2}, 1, v{T+2}
        v_lshl_or_b32 v{A1}, v{T+2}, 6, v{A1}
        v_add_u32 v{A1}, {W1S}, v{A1}
        v_xor_b32 v{A1+1}, 64, v{A1}""")
        ST = T
        NV = T + 6
        MFR = T + 8
        CA = T + 12
        SA = T + 14
        F = T + 16
        HA = 223
        CQ = ACC + 48
        p(f"""v_lshlrev_b32 v{CA}, 3, v0
        v_add_u32 v{CA}, {ST_CSQ}, v{CA}
        v_lshlrev_b32 v{HA}, 4, v0
        v_add_u32 v{CA+1}, {ST_CS1}, v{HA}
        v_and_b32 v{SA}, 31, v0
        v_lshlrev_b32 v{SA}, 4, v{SA}
        v_lshrrev_b32 v{SA+1}, 5, v0
        v_mul_u32_u24 v{SA+1}, 0x240, v{SA+1}
        v_xor_b32 v{SA}, v{SA}, v{SA+1}
        v_xor_b32 v{SA+1}, 0x480, v{SA}
        s_lshl_b32 s54, {sRB}, 2
        s_add_u32 s54, s54, {sW}
        s_mul_i32 s55, s54, {QKV_T}
        s_mul_i32 s56, {sCB}, {12*512}
        s_add_u32 s55, s55, s56
        s_add_u32 s56, s55, 4096
        s_mul_i32 s57, {sCB}, 3
        s_mul_i32 s62, s54, {H_T}
        s_lshl_b32 s63, {sCB}, 13
        s_add_u32 s62, s62, s63
        s_add_u32 s62, s62, {HOFF}
        s_add_u32 s63, s62, 4096
        s_mov_b32 s59, 0x3f803f80""")
        for r in range(4): p(f"v_mov_b32 v{SUM+r}, 0")
        def rd_x(ks):
            c, s = divmod(ks, 4)
            return p(f"ds_read_b128 {vr(XF+4*ks)}, v{AX+s} offset:{XS + (c%4)*16384}")
        def rd_q(i):
            ks, t = divmod(i, 3)
            c, s = divmod(ks, 4); b = WB + 4 * (i % 8)
            if t == 0: rd_x(ks)
            for jj in range(2):
                t0 = p(f"ds_read_b64_tr_b16 {vr(b+2*jj,2)}, v{AQ} offset:{(c%4)*12288 + (16*s+4*jj)*192 + 64*t}")
            return t0
        def stats(c):
            if self.opt.get("nostat"): return
            for i in range(16):
                x = XF + 16 * c + i
                p(f"v_dot2_f32_bf16 v{SUM+(i&1)}, v{x}, s59, v{SUM+(i&1)}")
                p(f"v_dot2_f32_bf16 v{SQ+(i&1)}, v{x}, v{x}, v{SQ+(i&1)}")
        self.stamp(43)
        self.barrier()
        self.stamp(1)
        LA = 6
        tok = {i: rd_q(i) for i in range(LA)}
        for i in range(84):
            ks, t = divmod(i, 3)
            a = ACC + 16 * t
            if i == 48:
                tn = p(f"buffer_load_dwordx2 {vr(NV,2)}, off, {SDBG}, 0 sc1")
            p.wait(lg=tok[i])
            p(MF(a, WB + 4 * (i % 8), XF + 4 * ks, None if ks == 0 else a))
            if i + LA < 84:
                if (i + LA) % 12 == 0:
                    p("s_barrier")
                    self.stamp(1 + (i + LA) // 12, True)
                tok[i + LA] = rd_q(i + LA)
            if i % 12 == 11: stats(i // 12)
        p(f"""v_add_f32 v{SUM}, v{SUM}, v{SUM+1}
        v_add_f32 v{SQ}, v{SQ}, v{SQ+1}
        v_mov_b32 v{SUM+1}, v{SUM}
        v_mov_b32 v{SQ+1}, v{SQ}
        v_permlane32_swap_b32 v{SUM}, v{SUM+1}
        v_permlane32_swap_b32 v{SQ}, v{SQ+1}
        v_add_f32 v{SUM}, v{SUM}, v{SUM+1}
        v_add_f32 v{SQ}, v{SQ}, v{SQ+1}
        v_mul_f32 v{SUM}, {fbits(-1.0/448)}, v{SUM}
        v_mul_f32 v{SQ}, {fbits(1.0/448)}, v{SQ}
        v_fma_f32 v{SQ}, -v{SUM}, v{SUM}, v{SQ}
        v_max_f32 v{SQ}, 0, v{SQ}
        v_add_f32 v{SQ}, {fbits(1e-5)}, v{SQ}
        v_rsq_f32 v{ST}, v{SQ}
        v_sqrt_f32 v{ST+2}, v{SQ}
        v_cvt_pk_bf16_f32 v{MFR}, v{SUM}, v{SUM}
        v_and_b32 v{MFR+1}, 0xffff0000, v{MFR}
        v_sub_f32 v{MFR+1}, v{SUM}, v{MFR+1}
        v_cvt_pk_bf16_f32 v{MFR}, v{SUM}, v{MFR+1}
        v_mul_f32 v{ST+4}, {fbits(-LOG2E)}, v{ST}
        v_mov_b32 v{MFR+1}, v{MFR}
        v_mov_b32 v{MFR+2}, v{MFR}
        v_mov_b32 v{MFR+3}, v{MFR}""")
        for t in range(3):
            p(f"v_mov_b32 v{CQ+4*t+2}, 0")
            p(f"v_mov_b32 v{CQ+4*t+3}, 0")
            p(f"""s_add_u32 s58, s57, {t}
            s_cmp_lt_u32 s58, 14
            s_cselect_b32 s58, {fbits(28 ** -0.5 * LOG2E)}, 1.0
            v_mul_f32 v{F+2*t}, s58, v{ST}""")
        Lt = self.lab("tag")
        p.wait(vm=tn)
        p(f"""v_readfirstlane_b32 s100, v{NV}
        v_readfirstlane_b32 s101, v{NV+1}
        s_cmp_lg_u32 s100, 0
        s_cbranch_scc1 {Lt}""")
        self.get_nonce(NV)
        p.label(Lt)
        p(f"""v_mov_b32 v{SUM}, {ST_CNT+16}
        ds_write_b64 v{SUM}, {vr(NV,2)}""")
        self.stamp(8)
        self.barrier()
        self.stamp(9)
        for t in range(3):
            tc = p(f"ds_read_b64 {vr(CQ+4*t,2)}, v{CA} offset:{512*t}")
        def rd_1(i):
            g, t = divmod(i, 2)
            hc, s = divmod(g, 4); b = WB + 4 * (i % 8)
            for jj in range(2):
                t0 = p(f"ds_read_b64_tr_b16 {vr(b+2*jj,2)}, v{A1+t} offset:{((hc+4)%8)*8192 + (16*s+4*jj)*128}")
            return t0
        p.wait(lg=tc)
        for t in range(3):
            a = ACC + 16 * t
            p(MF(a, CQ + 4 * t, MFR, a))
        LB = 7
        tk = {i: rd_1(i) for i in range(LB)}
        PK = ACC
        for t in range(3):
            a = ACC + 16 * t
            for i in range(8):
                p(f"v_pk_mul_f32 {vr(a+2*i,2)}, {vr(a+2*i,2)}, {vr(F+2*t,2)} op_sel_hi:[1,0]")
            for i in range(8):
                p(f"v_cvt_pk_bf16_f32 v{PK+8*t+i}, v{a+2*i}, v{a+2*i+1}")
        def st_q(n):
            t, u = divmod(n, 2)
            so, im = ("s55", 2048 * t) if t < 2 else ("s56", 0)
            p(f"buffer_store_dwordx4 {vr(PK+8*t+4*u)}, v{SA+u}, {SWS}, {so} offen offset:{im} sc1")
        def st_h(k, o):
            so, im = ("s62", 1024 * k) if k < 4 else ("s63", 1024 * (k - 4))
            p(f"buffer_store_dwordx4 {vr(o)}, v{HA}, {SWS}, {so} offen offset:{im} sc1")
        self.stamp(10)
        A2 = ACC + 32
        qpace = self.opt.get("qpace", 4); hpace = self.opt.get("hpace", 5)
        def silu(half, E, OUT, now):
            CF = E + 16
            for t in range(2):
                tc = p(f"ds_read_b128 {vr(CF+4*t)}, v{CA+1} offset:{2048*half + 1024*t}")
            p.wait(lg=tc)
            for t in range(2):
                p(MF(A2 + 16 * t, CF + 4 * t, MFR, A2 + 16 * t))
            for n in range(4):
                a = A2 + 8 * n; e = E + 8 * (n & 1); o = OUT + 4 * n
                for i in range(4):
                    p(f"v_pk_mul_f32 {vr(e+2*i,2)}, {vr(a+2*i,2)}, {vr(ST+4,2)} op_sel_hi:[1,0]")
                for i in range(8):
                    p(f"v_exp_f32 v{e+i}, v{e+i}")
                for i in range(4):
                    p(f"v_pk_fma_f32 {vr(e+2*i,2)}, {vr(e+2*i,2)}, {vr(ST+2,2)}, {vr(ST+2,2)} op_sel_hi:[1,0,0]")
                for i in range(8):
                    p(f"v_rcp_f32 v{e+i}, v{e+i}")
                for i in range(4):
                    p(f"v_pk_mul_f32 {vr(e+2*i,2)}, {vr(e+2*i,2)}, {vr(a+2*i,2)}")
                for i in range(4):
                    p(f"v_cvt_pk_bf16_f32 v{o+i}, v{e+2*i}, v{e+2*i+1}")
                if n in now: st_h(4 * half + n, o)
        for g in range(56):
            ks = g % 28
            for t in range(2):
                a = A2 + 16 * t; i = 2 * g + t
                p.wait(lg=tk[i])
                p(MF(a, WB + 4 * (i % 8), XF + 4 * ks, None if ks == 0 else a))
                if i + LB < 112:
                    if (i + LB) % 16 == 0:
                        p("s_barrier")
                        self.stamp(10 + (i + LB) // 16, True)
                    tk[i + LB] = rd_1(i + LB)
            if g < 28 and g % qpace == 0 and g // qpace < 6: st_q(g // qpace)
            if g >= 28 and (g - 28) % hpace == hpace // 2 and (g - 28) // hpace < 2: st_h(2 + (g - 28) // hpace, ACC + 16 + 8 + 4 * ((g - 28) // hpace))
            if g == 27:
                self.stamp(33)
                self.signal(0, sRB, sCB, F)
                self.stamp(34)
                p("s_barrier")
                self.stamp(35)
                silu(0, ACC, ACC + 16, (0, 1))
                self.stamp(36)
        p.raw("@PADS_ON")
        self.stamp(17)
        self.barrier()
        self.stamp(18)
        silu(1, 8, 32, (0, 1, 2, 3))
        self.stamp(19)
        self.attention()
        self.wo_final_A()

    KA, VA = 250, 252
    def attn_setup(self):
        p = self.p
        KA, VA, T = self.KA, self.VA, 8
        p(f"""v_lshrrev_b32 v{T}, 5, v0
        v_add_u32 v{T+1}, {sP0}, v{T}
        v_and_b32 v{T+1}, 3, v{T+1}
        v_lshlrev_b32 v{T+1}, 6, v{T+1}
        v_and_b32 v{T+2}, 31, v0
        v_lshlrev_b32 v{T+3}, 4, v{T+2}
        v_xor_b32 v{T+1}, v{T+1}, v{T+3}
        v_lshl_or_b32 v{KA}, v{T}, 9, v{T+1}
        s_lshl_b32 s54, {sW}, 11
        v_add_u32 v{KA}, s54, v{KA}
        v_xor_b32 v{KA+1}, 0x480, v{KA}
        v_lshlrev_b32 v{T}, 2, v{T}
        v_sub_u32 v{T+2}, v{T+2}, v{T}""")
        for r in range(16):
            p(f"v_cmp_gt_i32 s[{64+2*r}:{65+2*r}], {8*(r>>2)+(r&3)}, v{T+2}")
        p(f"""v_bfe_u32 v{T}, v0, 4, 1
        v_and_b32 v{T+1}, 1, v0
        v_lshl_or_b32 v{T}, v{T}, 1, v{T+1}
        v_add_u32 v{T+1}, {sP0}, v{T}
        v_and_b32 v{T+1}, 3, v{T+1}
        v_lshrrev_b32 v{T+2}, 5, v0
        v_xor_b32 v{T+1}, v{T+1}, v{T+2}
        v_lshlrev_b32 v{T+1}, 6, v{T+1}
        v_lshl_or_b32 v{T+1}, v{T}, 9, v{T+1}
        v_bfe_u32 v{T+2}, v0, 2, 2
        v_lshl_or_b32 v{T+1}, v{T+2}, 4, v{T+1}
        v_bfe_u32 v{T+2}, v0, 1, 1
        v_lshl_or_b32 v{T+1}, v{T+2}, 3, v{T+1}
        v_add_u32 v{VA}, s54, v{T+1}
        v_xor_b32 v{VA+1}, 0x80, v{VA}""")

    def attention(self):
        p = self.p
        p.label("L_A_attn")
        S = 64
        O = 208
        QF = 224
        KB = 232
        KA, VA = self.KA, self.VA
        MX = 248
        MK = 56
        T = 2
        self.stamp(20)
        self.barrier()
        self.stamp(21)
        for u in range(2):
            p(f"ds_read_b128 {vr(QF+4*u)}, v{KA+u} offset:{QOFF}")
        order = [0, 8, 1, 2, 3, 4, 5, 6, 7]
        KR = [O, O + 8, KB, KB + 8]
        def rd_k(n):
            j = order[n]; b = KR[n % 4]
            for u in range(2):
                t0 = p(f"ds_read_b128 {vr(b+4*u)}, v{KA+u} offset:{KOFF + 2048*j}")
            return t0
        fill = []
        fill.append([f"v_mov_b32 v{T}, 0xffff", f"v_mov_b32 v{T+1}, 0xffff0000"])
        mk = []
        for i in range(8):
            mk += [f"v_cndmask_b32 v{MK+i}, 0, v{T}, s[{64+4*i}:{65+4*i}]",
                   f"v_cndmask_b32 v{T+2+(i&1)}, 0, v{T+1}, s[{66+4*i}:{67+4*i}]",
                   f"v_or_b32 v{MK+i}, v{MK+i}, v{T+2+(i&1)}"]
        def maxes(j, first=False):
            a = S + 16 * j; r = []
            for i in range(8):
                m = MX + (i & 1)
                if first and i < 2: r.append(f"v_max_f32 v{m}, v{a+2*i}, v{a+2*i+1}")
                else: r.append(f"v_max3_f32 v{m}, v{a+2*i}, v{a+2*i+1}, v{m}")
            return r
        comb = [f"v_cndmask_b32 v{S+r}, v{S+128+r}, v{S+r}, s[{64+2*r}:{65+2*r}]" for r in range(16)]
        work = {0: fill[0] + mk[:8], 1: mk[8:20], 2: mk[20:] + comb[:8], 3: comb[8:] + maxes(1, True)[:4],
                4: maxes(1, True)[4:] + maxes(0), 5: maxes(2) + maxes(3)[:4], 6: maxes(3)[4:] + maxes(4),
                7: maxes(5), 8: maxes(6)}
        tok = {n: rd_k(n) for n in range(3)}
        for n in range(9):
            p.wait(lg=tok[n])
            j = order[n]; b = KR[n % 4]; a = S + 16 * j
            w = work[n]; h = len(w) // 2
            p(MF(a, b, QF, None))
            if n + 3 < 9: tok[n + 3] = rd_k(n + 3)
            for x in w[:h]: p(x)
            p(MF(a, b + 4, QF + 4, a))
            for x in w[h:]: p(x)
        def rd_v(j, b):
            for s in range(2):
                for jj in range(2):
                    t0 = p(f"ds_read_b64_tr_b16 {vr(b+4*s+2*jj,2)}, v{VA+jj} offset:{VOFF + 2048*j + 256*s}")
            return t0
        vorder = [1, 2, 3, 4, 5, 6, 7, 0, 8]
        vt = [None] * 9
        vt[0] = rd_v(vorder[0], KB + 8)
        for x in maxes(7): p(x)
        p(f"""v_max_f32 v{MX}, v{MX}, v{MX+1}
        v_mov_b32 v{MX+1}, v{MX}
        v_permlane32_swap_b32 v{MX}, v{MX+1}
        v_max_f32 v{MX}, v{MX}, v{MX+1}""")
        self.stamp(22)
        def sub(j):
            a = S + 16 * j
            for i in range(8):
                p(f"v_pk_add_f32 {vr(a+2*i,2)}, {vr(a+2*i,2)}, {vr(MX,2)} op_sel_hi:[1,0] neg_lo:[0,1] neg_hi:[0,1]")
        def pvm(n, pa, s):
            b = KB + 8 * ((n + 1) & 1)
            if s == 0: p.wait(lg=vt[n])
            p(MF(O, b + 4 * s, pa + 4 * s, None if (n == 0 and s == 0) else O))
        sub(vorder[0])
        for n in range(8):
            j = vorder[n]; a = S + 16 * j
            if n > 0: pvm(n - 1, S + 16 * vorder[n - 1], 0)
            for i in range(8): p(f"v_exp_f32 v{a+i}, v{a+i}")
            if n > 0: pvm(n - 1, S + 16 * vorder[n - 1], 1)
            for i in range(8, 16): p(f"v_exp_f32 v{a+i}, v{a+i}")
            vt[n + 1] = rd_v(vorder[n + 1], KB + 8 * (n & 1))
            for i in range(8): p(f"v_cvt_pk_bf16_f32 v{a+i}, v{a+2*i}, v{a+2*i+1}")
            if n < 7: sub(vorder[n + 1])
            if n == self.opt.get("sigh", 3):
                Lh = self.lab("noh")
                p(f"""s_cmp_eq_u32 {sHELP}, 1
                s_cbranch_scc1 {Lh}""")
                self.signal(1, sRB, sCB, T)
                p.label(Lh)
        for i in range(8):
            p(f"v_bfi_b32 v{S+8+i}, v{MK+i}, 0, v{S+i}")
            p(f"v_and_b32 v{S+i}, v{MK+i}, v{S+i}")
        pvm(7, S, 0); pvm(7, S, 1)
        pvm(8, S + 8, 0); pvm(8, S + 8, 1)
        p(f"""s_cmp_eq_u32 {sODD}, 1
        s_cselect_b64 s[54:55], -1, 0
        s_cselect_b32 s56, -1, 0
        s_mov_b32 s57, 0
        s_mov_b32 s58, 0
        s_cselect_b32 s59, 0, -1
        s_lshl_b32 s60, {sRBA}, 2
        s_add_u32 s60, s60, {sW}
        s_lshl_b32 s60, s60, 15
        s_lshl_b32 s61, {sHD}, 11
        s_add_u32 s62, s60, s61
        s_add_u32 s62, s62, {OOFF}
        v_lshlrev_b32 v{T+12}, 4, v0
        s_mov_b64 exec, 1
        v_mov_b32 v{T+8}, {ST_CNT}
        v_mov_b32 v{T+9}, 1
        ds_add_u32 v{T+8}, v{T+9}
        s_mov_b64 exec, -1
        v_cndmask_b32 v{T}, v{O+12}, v{O}, s[54:55]
        v_mov_b32 v{T+1}, v{T}
        v_permlane32_swap_b32 v{T}, v{T+1}
        v_cndmask_b32 v{T}, v{T+1}, v{T}, s[54:55]
        v_rcp_f32 v{T}, v{T}
        v_cndmask_b32 v{T+2}, v{T}, 0, s[56:57]
        v_cndmask_b32 v{T+4}, v{T}, 0, s[58:59]""")
        for i in range(8):
            f = T + 2 if i < 2 else (T + 4 if i >= 6 else T)
            p(f"v_pk_mul_f32 {vr(O+2*i,2)}, {vr(O+2*i,2)}, {vr(f,2)} op_sel_hi:[1,0]")
        for i in range(8):
            p(f"v_cvt_pk_bf16_f32 v{O+i}, v{O+2*i}, v{O+2*i+1}")
        for u in range(2):
            p(f"buffer_store_dwordx4 {vr(O+4*u)}, v{T+12}, {SWS}, s62 offen offset:{1024*u} sc1")
        self.stamp(23)

    def wo_final_A(self):
        p = self.p
        VD, AD, T = 4, 8, 12
        PA = 24
        WF = 32
        OF = 96
        ACC = 160
        p(f"s_lshl_b32 s56, {sW}, 14")
        self.w128_lane(VD, AD, T + 4, "s56")
        self.signal(2, sRBA, sHD, 2)
        self.stamp(24)
        p(f"""s_cmp_eq_u32 {sHELP}, 1
        s_cbranch_scc1 L_fin""")
        L0 = self.lab("kvfree")
        p(f"v_mov_b32 v{T}, {ST_CNT}")
        p.label(L0)
        p(f"ds_read_b32 v{T+1}, v{T}")
        p.wait_all(lg=True, force=True)
        p(f"""v_readfirstlane_b32 s60, v{T+1}
        s_cmp_lt_u32 s60, 4
        s_cbranch_scc1 {L0}""")
        p(f"""s_mul_i32 s57, {sW}, {112*896}
        s_lshl_b32 s58, {sNB}, 7
        s_add_u32 s57, s57, s58""")
        for g in range(4):
            p(f"s_add_u32 m0, s56, {4096*g}")
            for i in range(4 if g < 3 else 2):
                two = p(f"buffer_load_dwordx4 v{VD+i}, {SWO}, s57 offen offset:{1024*i} lds")
            p(f"s_add_u32 s57, s57, {32*896}")
        p(f"""v_and_b32 v{T}, 31, v0
        v_lshlrev_b32 v{T}, 3, v{T}
        s_lshl_b32 s54, {sMB}, 8
        s_add_u32 s54, s54, {FLAGS + 2*8192}
        v_add_u32 v{T}, s54, v{T}
        v_lshlrev_b32 v{T+4}, 4, v0
        v_add_u32 v{T+5}, {O_T}, v{T+4}
        s_lshl_b32 s57, {sMB}, 16
        s_lshl_b32 s58, {sW}, 13
        s_add_u32 s57, s57, s58
        s_add_u32 s57, s57, {OOFF}
        s_add_u32 s62, s57, 4096
        s_lshl_b32 s54, {sW}, 2
        s_lshl_b32 s58, 0x000f000f, s54
        s_mov_b32 s59, 0""")
        self.xload()
        tp = self.poll_issue(T, T + 2)
        self.part_addr("s56", PA)
        p.wait(vm=two)
        rho = [0, 24, 56, 80]
        for k in range(8):
            for t in range(2):
                for jj in range(2):
                    p(f"ds_read_b64_tr_b16 {vr(WF+8*k+4*t+2*jj,2)}, v{AD+t} offset:{(rho[k>>1]+16*(k&1)+4*jj)*128}")
        self.stamp(25)
        self.poll(T, T + 2, "s[58:59]", first=tp)
        self.stamp(26)
        toks = []
        for k in range(8):
            for a in range(2):
                so, im = ("s57", 1024 * k) if k < 4 else ("s62", 1024 * (k - 4))
                t0 = p(f"buffer_load_dwordx4 {vr(OF+8*k+4*a)}, v{T+4+a}, {SWS}, {so} offen offset:{im} sc1")
            toks.append(t0)
        p.wait_all(lg=True)
        for k in range(8):
            p.wait(vm=toks[k])
            for a in range(2):
                for t in range(2):
                    c = ACC + 16 * (2 * a + t)
                    p(MF(c, WF + 8 * k + 4 * t, OF + 8 * k + 4 * a, None if k == 0 else c))
        self.write_partials(ACC, PA)
        self.stamp(27)

    def final(self):
        p = self.p
        p.label("L_final")
        T = 8
        p(f"""v_lshrrev_b32 v{T}, 3, v0
        s_lshl_b32 s54, {sWAVE}, 3
        v_add_u32 v{T}, s54, v{T}
        v_and_b32 v{T+1}, 7, v0
        v_lshlrev_b32 v{T+2}, 1, v{T+1}
        v_xor_b32 v{T}, v{T}, v{T+2}
        v_lshlrev_b32 v{T}, 4, v{T}
        v_lshl_or_b32 v{T}, v{T+1}, 10, v{T}
        v_add_u32 v{T+1}, {W2R}, v{T}
        v_add_u32 v{T+2}, {W2R + 2*W2W}, v{T}
        v_mov_b32 v12, {fbits(-LOG2E)}
        v_mov_b32 v14, 1.0""")
        X = 96
        p("s_waitcnt vmcnt(0)")
        for i in range(4):
            p(f"v_lshlrev_b32 v{X+2*i}, 16, v{240+i}")
            p(f"v_and_b32 v{X+2*i+1}, 0xffff0000, v{240+i}")
        p("s_waitcnt lgkmcnt(0)")
        p.reset_counters()
        p("s_barrier")
        self.stamp(30)
        Fp, Sp = 32, 64
        tf = []
        for w in range(4):
            for e in range(2):
                tf.append(p(f"ds_read_b128 {vr(Fp+8*w+4*e)}, v{T+1+(w>>1)} offset:{(w&1)*W2W + e*8192}"))
        ts = []
        for w in range(4):
            for e in range(2):
                ts.append(p(f"ds_read_b128 {vr(Sp+8*w+4*e)}, v{T} offset:{w*16384 + e*8192}"))
        def red(b):
            for i in range(4):
                p(f"v_pk_add_f32 {vr(b+2*i,2)}, {vr(b+2*i,2)}, {vr(b+8+2*i,2)}")
                p(f"v_pk_add_f32 {vr(b+16+2*i,2)}, {vr(b+16+2*i,2)}, {vr(b+24+2*i,2)}")
            for i in range(4):
                p(f"v_pk_add_f32 {vr(b+2*i,2)}, {vr(b+2*i,2)}, {vr(b+16+2*i,2)}")
        p.wait(lg=tf[-1])
        red(Fp)
        e = Fp + 8
        for i in range(4):
            p(f"v_pk_mul_f32 {vr(e+2*i,2)}, {vr(Fp+2*i,2)}, v[12:13] op_sel_hi:[1,0]")
        for i in range(8):
            p(f"v_exp_f32 v{e+i}, v{e+i}")
        for i in range(4):
            p(f"v_pk_add_f32 {vr(e+2*i,2)}, {vr(e+2*i,2)}, v[14:15] op_sel_hi:[1,0]")
        for i in range(8):
            p(f"v_rcp_f32 v{e+i}, v{e+i}")
        p.wait(lg=ts[-1])
        red(Sp)
        for i in range(4):
            p(f"v_pk_mul_f32 {vr(e+2*i,2)}, {vr(e+2*i,2)}, {vr(Fp+2*i,2)}")
        for i in range(4):
            p(f"v_pk_fma_f32 {vr(X+2*i,2)}, {vr(Sp+2*i,2)}, {vr(e+2*i,2)}, {vr(X+2*i,2)}")
        for i in range(4):
            p(f"v_cvt_pk_bf16_f32 v{X+8+i}, v{X+2*i}, v{X+2*i+1}")
        p(f"buffer_store_dwordx4 {vr(X+8)}, v244, {SOUT}, 0 offen {self.opt.get('outf', '')}")
        p.label("L_fin")
        if self.prof:
            self.stamp(31)
            p("s_waitcnt vmcnt(0)")
            self.stamp(32)
            p("s_memrealtime s[96:97]")
            p("s_waitcnt lgkmcnt(0)")
            p("v_writelane_b32 v255, s96, 63")
            self.stamp_flush()
        p.label("L_end")

    def build(self):
        self.prologue()
        self.roleB()
        self.roleA()
        self.final()
        body = self.p.text(self.opt.get('pad', 512))
        hdr = open("cdna_kernels/" + KN + ".s.ref").read().split("\n")
        top = [l for l in hdr if l.startswith(";") and "@launch" not in l and "Override" not in l and "grid=ceil" not in l]
        s = "\n".join(top) + "\n; @launch grid=(256,1,1) block=(512,1,1) lds=163840\n"
        s += f""".amdgcn_target "amdgcn-amd-amdhsa--gfx950"
.text
.globl {KN}_kernel
.p2align 8
.type {KN}_kernel,@function
{KN}_kernel:
{body}
    s_endpgm
L_code_end:
.set CODE_BYTES, L_code_end - {KN}_kernel - 128
.section .rodata,"a"
.p2align 6
.amdhsa_kernel {KN}_kernel
  .amdhsa_next_free_vgpr 256
  .amdhsa_next_free_sgpr 102
  .amdhsa_accum_offset 256
  .amdhsa_group_segment_fixed_size 0
  .amdhsa_kernarg_size 72
  .amdhsa_user_sgpr_count 2
  .amdhsa_user_sgpr_kernarg_segment_ptr 1
  .amdhsa_system_sgpr_workgroup_id_x 1
.end_amdhsa_kernel
"""
        return s

if __name__ == "__main__":
    prof = 2 if "--prof2" in sys.argv else (1 if "--prof" in sys.argv else 0)
    opt = {}
    for a in sys.argv[1:]:
        if a.startswith("--") and "=" in a:
            k, v = a[2:].split("=")
            opt[k] = int(v) if v.lstrip("-").isdigit() else v
    out = [a for a in sys.argv[1:] if not a.startswith("--")]
    g = G(prof, opt)
    s = g.build()
    path = out[0] if out else "cdna_kernels/" + KN + ".s"
    open(path, "w").write(s)
    print("wrote", path, "nops inserted:", g.p.nnop)
```

```python
import sys, math, struct
from asmlib import Prog
KN = "recurrent_scan__sliding_block__dense_activation_silu__prompt"

QKV_T = 86016
HOFF, H_T = 0x600000, 114688
OOFF, O_T = 0xE00000, 32768
FLAGS = 0x1000000
PROF = 0x1100000
WS_BYTES = 0x1200000
XS, WQS, W1S, MISC = 0, 65536, 81920, 155648
W2A = 20480
KOFF, VOFF, QOFF = 0, 24576, 49152
W2R, W2W = 65536, 22528
ST_CSQ = MISC
ST_CS1 = MISC + 2048
ST_CNT = MISC + 6144
SX, SWQ, SWO, SW1, SW2, SOUT, SDBG, SWS = [f"s[{i}:{i+3}]" for i in range(8, 40, 4)]
sWAVE, sW, sXCD, sIDX, sRB, sCB, sMB, sNB, sHD, sRBA, sROT, sHELP = [f"s{i}" for i in range(40, 52)]
sP0, sODD = "s52", "s53"
sNON = "s[100:101]"
LOG2E = 1.4426950408889634
def fbits(x): return "0x%08x" % struct.unpack("<I", struct.pack("<f", x))[0]
def vr(a, n=4): return f"v[{a}:{a+n-1}]"
def MF(d, a, b, c): return f"v_mfma_f32_32x32x16_bf16 {vr(d,16)}, {vr(a)}, {vr(b)}, {'0' if c is None else vr(c,16)}"

class G:
    def __init__(self, prof=0, opt=None):
        self.p = Prog(); self.prof = prof; self.nlab = 0
        self.opt = opt or {}
    def lab(self, s):
        self.nlab += 1; return f"L_{s}_{self.nlab}"
    def stamp(self, k, fine=False):
        if not self.prof or (fine and self.prof < 2): return
        p = self.p
        p.wait_all(lg=True)
        p(f"s_memtime s[98:99]")
        p.I("s_waitcnt lgkmcnt(0)")
        p(f"v_writelane_b32 v255, s98, {k}")
    def stamp_flush(self):
        p = self.p
        p(f"""s_lshl_b32 s98, s2, 3
        s_add_u32 s98, s98, {sWAVE}
        s_lshl_b32 s98, s98, 8
        s_add_u32 s98, s98, {PROF}
        v_lshlrev_b32 v254, 2, v0
        buffer_store_dword v255, v254, {SWS}, s98 offen""")
    def barrier(self):
        self.p.wait_all(lg=True)
        self.p("s_barrier")

    def get_nonce(self, vt):
        p = self.p
        L0, L1 = self.lab("non"), self.lab("nok")
        p(f"s_mov_b32 s60, 0")
        p.label(L0)
        p(f"buffer_load_dwordx2 {vr(vt,2)}, off, {SDBG}, 0 sc1")
        p.wait_all(vm=True, force=True)
        p(f"""v_readfirstlane_b32 s100, v{vt}
        v_readfirstlane_b32 s101, v{vt+1}
        s_add_u32 s60, s60, 1
        s_cmp_lg_u32 s100, 0
        s_cbranch_scc1 {L1}
        s_sleep 8
        s_cmp_lt_u32 s60, 0x10000
        s_cbranch_scc1 {L0}""")
        p.label(L1)

    def poll_issue(self, voff, vt):
        return self.p(f"buffer_load_dwordx2 {vr(vt,2)}, v{voff}, {SWS}, 0 offen sc1")
    def poll_test(self, vt, mask):
        self.p(f"""v_cmp_ne_u64 vcc, {sNON}, {vr(vt,2)}
        s_nop 1
        s_and_b64 vcc, vcc, {mask}""")
    def poll(self, voff, vt, mask, sleep=4, first=None):
        p = self.p
        L0, L1 = self.lab("poll"), self.lab("pok")
        p(f"s_mov_b32 s60, 0")
        if first is not None:
            p.wait(vm=first)
            self.poll_test(vt, mask)
            p(f"s_cbranch_scc0 {L1}")
        n0, d0 = p.vm_n, p.vm_done
        p.label(L0)
        self.poll_issue(voff, vt)
        p.wait_all(vm=True, force=True)
        p(f"s_add_u32 s60, s60, 1")
        self.poll_test(vt, mask)
        p(f"""s_cbranch_scc0 {L1}
        s_sleep {sleep}
        s_cmp_lt_u32 s60, 0x10000
        s_cbranch_scc1 {L0}""")
        p.label(L1)
        if first is not None:
            p.vm_n, p.vm_done = n0, d0

    def signal(self, which, srow, scol, vt):
        p = self.p
        p(f"""s_lshl_b32 s60, {srow}, 2
        s_add_u32 s60, s60, {sW}
        s_lshl_b32 s60, s60, 7
        s_lshl_b32 s61, {scol}, 3
        s_add_u32 s60, s60, s61
        s_add_u32 s60, s60, {FLAGS + 8192*which}
        v_mov_b32 v{vt}, s100
        v_mov_b32 v{vt+1}, s101
        s_mov_b64 exec, 1""")
        p.wait_all(vm=True, force=True)
        p(f"""buffer_store_dwordx2 {vr(vt,2)}, off, {SWS}, s60 sc1
        s_mov_b64 exec, -1""")

    def prologue(self):
        p = self.p
        p(f"""s_load_dwordx2 s[8:9], s[0:1], 0
        s_load_dwordx2 s[12:13], s[0:1], 8
        s_load_dwordx2 s[16:17], s[0:1], 16
        s_load_dwordx2 s[20:21], s[0:1], 32
        s_load_dwordx2 s[24:25], s[0:1], 40
        s_load_dwordx2 s[28:29], s[0:1], 48
        s_load_dwordx2 s[32:33], s[0:1], 56
        s_load_dwordx2 s[36:37], s[0:1], 64""")
        if self.prof:
            p("s_memtime s[96:97]")
            p("s_memrealtime s[94:95]")
        if self.opt.get("span"):
            p("s_memtime s[96:97]")
            p("s_memrealtime s[98:99]")
        p(f"""s_mov_b32 s11, 0x00020000
        s_cmp_ge_u32 s2, 32
        s_cbranch_scc1 L_nopf
        s_getpc_b64 s[4:5]
        s_mov_b32 s6, CODE_BYTES
        s_mov_b32 s7, s11
        v_lshlrev_b32 v1, 7, v0
        buffer_load_dword v2, v1, s[4:7], 0 offen
        L_nopf:
        v_lshrrev_b32 v1, 6, v0
        s_cmp_ge_u32 s2, 256
        s_cbranch_scc1 L_end
        s_and_b32 {sXCD}, s2, 7
        s_lshr_b32 {sIDX}, s2, 3
        v_readfirstlane_b32 {sWAVE}, v1
        v_and_b32 v0, 63, v0
        s_cmp_lt_u32 {sIDX}, 4
        s_cselect_b32 {sHELP}, 1, 0
        s_max_u32 s54, {sIDX}, 4
        s_sub_u32 s54, s54, 4
        s_mul_i32 s55, s54, 37
        s_lshr_b32 s55, s55, 8
        s_mul_i32 s56, s55, 7
        s_sub_u32 {sNB}, s54, s56
        s_lshl_b32 {sMB}, {sXCD}, 2
        s_add_u32 {sMB}, {sMB}, s55
        s_lshr_b32 {sRB}, {sXCD}, 1
        s_lshl_b32 {sRB}, {sRB}, 2
        s_add_u32 {sRB}, {sRB}, s55
        s_and_b32 {sCB}, {sXCD}, 1
        s_mul_i32 {sCB}, {sCB}, 7
        s_add_u32 {sCB}, {sCB}, {sNB}
        s_and_b32 {sW}, {sWAVE}, 3
        s_mov_b32 s10, 1835008
        s_mov_b32 s14, 1204224
        s_mov_b32 s15, s11
        s_cmp_lt_u32 {sWAVE}, 4
        s_cbranch_scc1 L_roleA""")

    def prologue2(self):
        p = self.p
        p(f"""s_and_b32 {sODD}, {sIDX}, 1
        s_lshl_b32 {sHD}, {sXCD}, 1
        s_add_u32 {sHD}, {sHD}, {sODD}
        s_lshr_b32 {sRBA}, {sIDX}, 1
        s_mul_i32 {sP0}, {sHD}, 7
        s_lshr_b32 {sP0}, {sP0}, 1
        s_mov_b32 s18, 401408
        s_mov_b32 s19, 0x00020000
        s_mov_b32 s22, 1605632
        s_mov_b32 s23, 0x00020000
        s_mov_b32 s26, 1605632
        s_mov_b32 s27, 0x00020000
        s_mov_b32 s30, 1835008
        s_mov_b32 s31, 0x00020000
        s_mov_b32 s34, 256
        s_mov_b32 s35, 0x00020000
        s_mov_b32 s38, {WS_BYTES}
        s_mov_b32 s39, 0x00020000""")
        if self.prof:
            p("v_mov_b32 v255, 0")
            p("s_waitcnt lgkmcnt(0)")
            p("v_writelane_b32 v255, s96, 0")
            p("v_writelane_b32 v255, s94, 62")

    def trlane(self, d):
        self.p(f"""v_lshrrev_b32 v{d}, 5, v0
        v_lshlrev_b32 v{d}, 3, v{d}
        v_bfe_u32 v{d+2}, v0, 2, 2
        v_add_u32 v{d}, v{d}, v{d+2}
        v_bfe_u32 v{d+1}, v0, 4, 1
        v_lshlrev_b32 v{d+1}, 5, v{d+1}
        v_and_b32 v{d+3}, 1, v0
        v_lshl_or_b32 v{d+1}, v{d+3}, 4, v{d+1}
        v_bfe_u32 v{d+3}, v0, 1, 1
        v_lshl_or_b32 v{d+1}, v{d+3}, 3, v{d+1}""")

    def w128_lane(self, VD, AD, T, base_s):
        p = self.p
        p(f"""v_lshrrev_b32 v{T}, 3, v0
        v_mul_u32_u24 v{T}, 896, v{T}
        v_and_b32 v{T+1}, 7, v0
        v_bfe_u32 v{T+2}, v0, 4, 1
        v_lshlrev_b32 v{T+2}, 2, v{T+2}
        v_xor_b32 v{T+1}, v{T+1}, v{T+2}
        v_lshl_add_u32 v{VD}, v{T+1}, 4, v{T}""")
        for i in range(1, 4):
            p(f"v_add_u32 v{VD+i}, {i*(8*896-1024)}, v{VD}")
        self.trlane(T)
        p(f"""v_lshlrev_b32 v{AD}, 7, v{T}
        v_add_u32 v{AD}, v{AD}, v{T+1}
        v_lshrrev_b32 v{T+2}, 1, v{T+2}
        v_lshl_or_b32 v{AD}, v{T+2}, 6, v{AD}
        v_add_u32 v{AD}, {base_s}, v{AD}
        v_xor_b32 v{AD+1}, 64, v{AD}""")

    def part_addr(self, base_s, T):
        p = self.p
        p(f"""v_and_b32 v{T}, 31, v0
        v_lshrrev_b32 v{T+1}, 5, v0
        v_lshlrev_b32 v{T+2}, 1, v{T+1}
        v_xor_b32 v{T}, v{T}, v{T+2}
        v_lshlrev_b32 v{T}, 4, v{T}
        v_lshl_or_b32 v{T}, v{T+1}, 10, v{T}
        v_add_u32 v{T}, {base_s}, v{T}
        v_xor_b32 v{T+1}, 64, v{T}
        v_xor_b32 v{T+2}, 0x80, v{T}
        v_xor_b32 v{T+3}, 0xc0, v{T}""")
    def write_partials(self, ACC, T):
        p = self.p
        for a in range(2):
            for t in range(2):
                for u in range(2):
                    for e in range(2):
                        r = ACC + 16 * (2 * a + t) + 8 * u + 4 * e
                        p(f"ds_write_b128 v{T+2*t+u}, {vr(r)} offset:{e*8192 + (4*t+2*u)*1024 + a*512}")

    def xload(self):
        self.p(f"""s_lshl_b32 s60, {sMB}, 3
        s_add_u32 s60, s60, {sWAVE}
        s_mul_i32 s60, s60, {8*896}
        s_lshl_b32 s61, {sNB}, 7
        s_add_u32 s60, s60, s61
        v_lshrrev_b32 v244, 3, v0
        v_mul_u32_u24 v244, 896, v244
        v_and_b32 v245, 7, v0
        v_lshl_add_u32 v244, v245, 4, v244
        v_add_u32 v244, s60, v244
        buffer_load_dwordx4 v[240:243], v244, {SX}, 0 offen""")

    def helper_prefetch(self, T):
        p = self.p
        if not self.opt.get("hpf", 2): return
        p(f"""s_lshl_b32 s54, s2, 3
        s_add_u32 s54, s54, {sWAVE}
        v_lshlrev_b32 v{T}, 7, v0
        s_mul_i32 s55, s54, 6272
        s_mul_i32 s56, s54, 1568
        s_and_b32 s56, s56, 0xffffff80
        s_waitcnt vmcnt(0)
        s_bfm_b64 exec, 49, 0
        buffer_load_dword v{T+1}, v{T}, {SW1}, s55 offen
        buffer_load_dword v{T+2}, v{T}, {SW2}, s55 offen
        s_mov_b64 exec, 0x1fff
        buffer_load_dword v{T+3}, v{T}, {SWO}, s56 offen
        s_mov_b64 exec, -1""")
        if self.opt.get("hpf", 2) >= 2:
            Lp = self.lab("pf")
            p(f"""s_lshl_b32 s54, {sIDX}, 3
            s_add_u32 s54, s54, {sWAVE}
            s_and_b32 s55, s54, 3
            s_mul_i32 s55, s55, {448*896}
            s_lshr_b32 s56, s54, 2
            s_mul_i32 s56, s56, 7168
            s_add_u32 s55, s55, s56
            s_mov_b32 s57, 0
            s_waitcnt vmcnt(0)
            s_bfm_b64 exec, 56, 0""")
            p.label(Lp)
            p(f"""buffer_load_dword v{T+1}, v{T}, {SW2}, s55 offen
            s_add_u32 s55, s55, {8*7168}
            s_add_u32 s57, s57, 1
            s_cmp_lt_u32 s57, 7
            s_cbranch_scc1 {Lp}
            s_mov_b64 exec, -1
            s_mul_i32 s55, s54, 12544
            buffer_load_dword v{T+1}, v{T}, {SWO}, s55 offen
            s_add_u32 s55, s55, 4352
            buffer_load_dword v{T+1}, v{T}, {SWO}, s55 offen""")

    def roleB(self):
        p = self.p
        p.reset_counters()
        WF = 8
        ACC = 152
        VX, VQ, V1 = 152, 156, 160
        AQ, A1, CW = 164, 165, 166
        FB = 168
        CS = 200
        SEL = 208
        PV, PT = 204, 206
        T = 216
        VD, AD = 246, 250
        p(f"""s_cmp_eq_u32 {sHELP}, 1
        s_cbranch_scc1 L_B_help
        s_lshl_b32 s59, {sRB}, 1
        s_add_u32 s59, s59, {sCB}
        s_mul_i32 s55, s59, 37
        s_lshr_b32 s55, s55, 8
        s_mul_i32 s55, s55, 7
        s_sub_u32 s59, s59, s55
        {'s_mov_b32 s59, 0' if self.opt.get('norot') else ''}
        s_lshl_b32 s54, {sRB}, 2
        s_add_u32 s54, s54, {sW}
        s_mul_i32 s54, s54, {32*896}
        v_lshrrev_b32 v{T}, 3, v0
        v_mul_u32_u24 v{T}, 896, v{T}
        v_add_u32 v{T}, s54, v{T}
        v_and_b32 v{T+1}, 7, v0
        v_lshrrev_b32 v{T+2}, 4, v0
        v_xor_b32 v{T+1}, v{T+1}, v{T+2}
        v_lshl_add_u32 v{VX}, v{T+1}, 4, v{T}
        v_xor_b32 v{VX+1}, 64, v{VX}
        v_add_u32 v{VX+2}, {2*(8*896-1024)}, v{VX}
        v_add_u32 v{VX+3}, {3*(8*896-1024)}, v{VX+1}
        v_add_u32 v{VX+1}, {8*896-1024}, v{VX+1}
        s_lshl_b32 s56, {sW}, 12""")
        def nextc(s):
            p(f"""s_add_u32 {s}, {s}, 1
            s_cmp_eq_u32 {s}, 7
            s_cselect_b32 {s}, 0, {s}""")
        tok = {}
        def grp(pre, ins, post=None, key=None):
            out = []
            for n, x in enumerate(ins):
                def f(n=n, x=x):
                    if n == 0: pre()
                    t0 = p(x)
                    if n == len(ins) - 1:
                        if post: post()
                        if key is not None: tok[key] = t0
                out.append(f)
            return out
        def dma_x(c):
            def pre():
                p(f"""s_add_u32 m0, s56, {XS + (c%4)*16384}
                s_lshl_b32 s62, s59, 7""")
                if c == 0:
                    if self.prof: p("s_memtime s[70:71]")
                    p("s_waitcnt lgkmcnt(0)")
                    if self.prof: p("s_memtime s[72:73]")
            return grp(pre, [f"buffer_load_dwordx4 v{VX+i}, {SX}, s62 offen offset:{1024*i} lds" for i in range(4)])
        def dma_w(c):
            pre = lambda: p(f"""s_add_u32 m0, s57, {(c%4)*12288}
            s_mul_i32 s62, s59, {64*2688}""")
            return grp(pre, [f"buffer_load_dwordx4 v{VQ+i}, {SWQ}, s62 offen offset:{1024*i} lds" for i in range(3)],
                       lambda: nextc("s59"), ("q", c))
        def dma_1(u):
            out = []
            for hc in (2 * u, 2 * u + 1):
                def pre(hc=hc):
                    p(f"""s_add_u32 m0, s58, {((hc+4)%8)*8192}
                    s_mul_i32 s62, s59, {64*3584}""")
                    if hc >= 7: p("s_add_u32 s62, s62, 128")
                out += grp(pre, [f"buffer_load_dwordx4 v{V1+i}, {SW1}, s62 offen offset:{1024*i} lds" for i in range(2)],
                           lambda: nextc("s59"), ("1", u))
            return out
        def dma_2(n, slot0, key=None):
            out = []; k = 0
            while k < n:
                m = min(2, n - k)
                out += grp(lambda k=k: p(f"s_add_u32 m0, s55, {(slot0+k)*2048}"),
                           [f"buffer_load_dwordx4 v{VD+i}, {SW2}, s87 offen offset:{1024*i} lds" for i in range(2 * m)],
                           lambda m=m: p(f"s_add_u32 s87, s87, {16*m*896}"), key)
                k += m
            return out
        def run(l):
            for f in l: f()
        def weave(dm, work):
            n, m = len(dm), len(work); d = 0
            for i, f in enumerate(work):
                while d < n and d * m <= i * n:
                    dm[d](); d += 1
                f()
            run(dm[d:])
        run(dma_x(0))
        p(f"""s_mul_i32 s54, {sW}, {16*2688}
        s_mul_i32 s55, {sCB}, 192
        s_add_u32 s54, s54, s55
        s_mul_i32 s57, {sW}, 3072
        s_add_u32 s57, s57, {WQS}""")
        for i in range(3):
            p(f"""v_add_u32 v{T}, {64*i}, v0
            v_mul_u32_u24 v{T+1}, 5462, v{T}
            v_lshrrev_b32 v{T+1}, 16, v{T+1}
            v_mul_u32_u24 v{T+1}, {2688-192}, v{T+1}
            v_lshl_add_u32 v{T+1}, v0, 4, v{T+1}
            v_add_u32 v{VQ+i}, s54, v{T+1}""")
        run(dma_w(0))
        if self.prof: p("s_memtime s[74:75]")
        self.prologue2()
        if self.prof:
            p("v_writelane_b32 v255, s70, 40")
            p("v_writelane_b32 v255, s72, 41")
            p("v_writelane_b32 v255, s74, 42")
        p(f"""v_mov_b32 v{T}, {ST_CNT}
        v_mov_b32 v{T+1}, 0
        ds_write_b32 v{T}, v{T+1}
        s_lshl_b32 s58, {sW}, 11
        s_add_u32 s58, s58, {W1S}
        s_mul_i32 s54, {sW}, {16*3584}
        s_lshl_b32 s55, {sCB}, 8
        s_add_u32 s54, s54, s55
        v_lshrrev_b32 v{T}, 3, v0
        v_mul_u32_u24 v{T}, 3584, v{T}
        v_and_b32 v{T+1}, 7, v0
        v_bfe_u32 v{T+2}, v0, 4, 1
        v_lshlrev_b32 v{T+2}, 2, v{T+2}
        v_xor_b32 v{T+1}, v{T+1}, v{T+2}
        v_lshl_add_u32 v{T}, v{T+1}, 4, v{T}
        v_add_u32 v{V1}, s54, v{T}
        v_add_u32 v{V1+1}, {8*3584-1024}, v{V1}""")
        self.trlane(T)
        p(f"""s_min_u32 s54, {sW}, 2
        s_lshl_b32 s54, s54, 6
        s_add_u32 s54, s54, {WQS}
        v_mul_u32_u24 v{AQ}, 192, v{T}
        v_add_u32 v{AQ}, v{AQ}, v{T+1}
        v_add_u32 v{AQ}, s54, v{AQ}
        v_lshlrev_b32 v{A1}, 7, v{T}
        v_add_u32 v{A1}, v{A1}, v{T+1}
        v_lshrrev_b32 v{T+2}, 1, v{T+2}
        s_and_b32 s54, {sW}, 1
        v_xor_b32 v{T+2}, s54, v{T+2}
        v_lshl_or_b32 v{A1}, v{T+2}, 6, v{A1}
        s_lshr_b32 s54, {sW}, 1
        s_lshl_b32 s54, s54, 12
        s_add_u32 s54, s54, {W1S}
        v_add_u32 v{A1}, s54, v{A1}
        s_lshl_b32 s54, {sW}, 9
        s_add_u32 s54, s54, {ST_CSQ}
        v_lshlrev_b32 v{CW}, 3, v0
        v_add_u32 v{CW}, s54, v{CW}
        s_and_b32 s54, {sW}, 1
        s_lshl_b32 s54, s54, 10
        s_lshr_b32 s60, {sW}, 1
        s_lshl_b32 s60, s60, 3
        s_add_u32 s54, s54, s60
        s_add_u32 s54, s54, {ST_CS1}
        v_lshlrev_b32 v{CW+1}, 4, v0
        v_add_u32 v{CW+1}, s54, v{CW+1}
        s_mul_i32 s87, {sW}, {448*896}
        s_lshl_b32 s54, {sNB}, 7
        s_add_u32 s87, s87, s54
        s_mul_i32 s55, {sW}, {W2A}""")
        self.w128_lane(VD, AD, T, "s55")
        self.kv_setup(PV, T)
        if self.opt.get("bprio", 0): p(f"s_setprio {self.opt['bprio']}")
        p(f"""v_lshrrev_b32 v{T}, 2, v0
        v_lshrrev_b32 v{T+1}, 4, v0
        v_xor_b32 v{T}, v{T}, v{T+1}
        v_and_b32 v{T}, 1, v{T}
        v_cmp_eq_u32 vcc, 0, v{T}
        v_mov_b32 v{T+1}, 0x3f803f80
        v_cndmask_b32 v{SEL}, 0, v{T+1}, vcc
        v_cmp_gt_u32 s[78:79], 32, v0
        v_mov_b32 v{SEL+1}, v{SEL}
        v_mov_b32 v{SEL+2}, v{SEL}
        v_mov_b32 v{SEL+3}, v{SEL}""")
        first = {"f": True}
        def colsum(addr, offs):
            w = []; tk = {}
            if self.opt.get("nocs"): return [lambda: None]
            for s, (off, rowb) in enumerate(offs):
                def f(s=s, off=off, rowb=rowb):
                    for jj in range(2):
                        tk[s] = p(f"ds_read_b64_tr_b16 {vr(FB+4*s+2*jj,2)}, v{addr} offset:{off + 4*jj*rowb}")
                w.append(f)
            def g():
                for s in range(len(offs)):
                    p.wait(lg=tk[s])
                    p(f"v_mfma_f32_16x16x32_bf16 {vr(CS)}, {vr(SEL)}, {vr(FB+4*s)}, {'0' if first['f'] else vr(CS)}")
                    first["f"] = False
            w.append(g)
            return w
        def csfrag(addr, off):
            p(f"""v_cndmask_b32 v{CS}, 0, v{CS}, s[78:79]
            v_cvt_pk_bf16_f32 v{T+8}, v{CS}, v{CS}
            v_and_b32 v{T+9}, 0xffff0000, v{T+8}
            v_sub_f32 v{T+9}, v{CS}, v{T+9}
            v_cvt_pk_bf16_f32 v{T+9}, v{T+9}, v{T+9}
            ds_write_b64 v{addr}, {vr(T+8,2)} offset:{off}""")
            first["f"] = True
        def frag2(dst, slot):
            for t in range(2):
                for jj in range(2):
                    t0 = p(f"ds_read_b64_tr_b16 {vr(dst+4*t+2*jj,2)}, v{AD+t} offset:{slot*2048 + jj*512}")
            return t0
        self.stamp(43)
        run(dma_x(1) + dma_w(1))
        for c in range(7):
            p.wait(vm=tok["q", c])
            self.stamp(1 + c, c > 0)
            self.barrier()
            dm = dma_x(c + 2) + dma_w(c + 2) if c < 5 else dma_1(c - 5)
            weave(dm, colsum(AQ, [((c % 4) * 12288 + 16 * s_ * 192, 192) for s_ in range(4)]))
        csfrag(CW, 0)
        NR1 = 10
        hco = lambda hc: [(((hc + 4) % 8) * 8192 + 2048 * s_, 128) for s_ in range(2)]
        for c in range(7):
            p.wait(vm=tok["1", c])
            self.stamp(9 + c, c > 0)
            self.barrier()
            dm = dma_1(c + 2) if c < 5 else []
            if c == 0:
                p(f"""v_mov_b32 v{T+12}, {ST_CNT+16}
                ds_read_b64 {vr(T+12,2)}, v{T+12}""")
                dm += dma_2(2, 0)
            if c in (1, 2): dm += dma_2(1, 1 + c, "b0")
            if c == 3:
                weave(dm[:2], colsum(A1, hco(6)))
                csfrag(CW + 1, 0)
                self.barrier()
                weave(dm[2:] + dma_2(6, 4, "b1"), colsum(A1, hco(7)))
                p(f"""v_readfirstlane_b32 s100, v{T+12}
                v_readfirstlane_b32 s101, v{T+13}""")
            elif c == 4:
                p.wait(vm=tok["b0"])
                for k in range(4): frag2(WF + 8 * k, k)
                weave(dm, colsum(A1, hco(8) + hco(9)))
            elif c == 5:
                tpoll = self.poll_issue(PV, PT)
                run(colsum(A1, hco(10) + hco(11)))
                p.wait(vm=tok["b1"])
                for k in range(4, 10): frag2(WF + 8 * k, k)
            elif c == 6:
                p.wait(vm=tpoll)
                self.poll_test(PT, "s[92:93]")
                p(f"s_cbranch_scc1 L_B_kvlate")
                st0 = (p.vm_n, p.vm_done, p.lg_n, p.lg_done)
                kv = self.kv_dma()
                weave(kv[:6], colsum(A1, hco(12) + hco(13)))
                csfrag(CW + 1, 2048)
                self.stamp(17)
                self.barrier()
                self.stamp(18)
                run(kv[6:])
                p("s_branch L_B_kvdone")
                p.label("L_B_kvlate")
                p.vm_n, p.vm_done, p.lg_n, p.lg_done = st0
                first["f"] = False
                run(colsum(A1, hco(12) + hco(13)))
                csfrag(CW + 1, 2048)
                self.stamp(16)
                self.barrier()
                p("s_branch L_B_kv")
            else:
                weave(dm, colsum(A1, hco(2 * c) + hco(2 * c + 1)))
            if c == 0: pass
        p.label("L_B_help")
        self.prologue2()
        p(f"""v_mov_b32 v{T}, {ST_CNT}
        v_mov_b32 v{T+1}, 0
        ds_write_b32 v{T}, v{T+1}
        s_waitcnt lgkmcnt(0)""")
        self.helper_prefetch(T)
        self.kv_setup(PV, T + 4)
        self.get_nonce(T + 4)
        p.label("L_B_kv")
        self.poll(PV, PT, "s[92:93]", 8)
        run(self.kv_dma())
        p.label("L_B_kvdone")
        if self.opt.get("padb", 1): p.raw("@PADS_ON")
        self.stamp(19)
        self.kv_fix(T)
        self.stamp(20)
        self.barrier()
        p(f"""s_cmp_eq_u32 {sHELP}, 1
        s_cbranch_scc1 L_fin
        s_mul_i32 s54, {sW}, {W2W - W2A}
        s_add_u32 s54, s54, {W2R}
        v_add_u32 v{AD}, s54, v{AD}
        v_add_u32 v{AD+1}, s54, v{AD+1}
        s_add_u32 s55, s55, s54""")
        run(dma_2(4, 0, "c0") + dma_2(4, 4, "c1") + dma_2(3, 8))
        HA = 252
        p(f"""v_and_b32 v{T}, 31, v0
        v_lshlrev_b32 v{T}, 3, v{T}
        s_lshl_b32 s54, {sMB}, 8
        s_add_u32 s54, s54, {FLAGS + 8192}
        v_add_u32 v{T}, s54, v{T}
        v_lshlrev_b32 v{HA}, 4, v0
        v_add_u32 v{HA+1}, {H_T}, v{HA}
        s_mul_i32 s56, {sMB}, {2*H_T}
        s_mul_i32 s58, {sW}, {28*1024}
        s_add_u32 s56, s56, s58
        s_add_u32 s56, s56, {HOFF}
        s_mul_i32 s54, {sW}, 7
        s_lshr_b32 s54, s54, 1
        s_lshl_b32 s58, 0x000f000f, s54
        s_mov_b32 s59, 0""")
        self.part_addr("s55", 4)
        p.wait(vm=tok["c0"])
        for k in range(4): frag2(WF + 8 * (NR1 + k), k)
        p.wait_all(lg=True)
        run(dma_2(4, 0))
        p.wait(vm=tok["c1"])
        for k in range(4, 8): frag2(WF + 8 * (NR1 + k), k)
        p.wait_all(lg=True)
        run(dma_2(3, 4))
        slot_of = {18: 8, 19: 9, 20: 10}
        for k in range(21, 28): slot_of[k] = k - 21
        self.xload()
        self.stamp(21)
        self.poll(T, T + 2, "s[58:59]")
        self.stamp(22)
        free = [216, 224, 232]
        hb = {}; th = {}
        st = {"n": 0}
        def issue_h():
            k = st["n"]
            b = free.pop(0); hb[k] = b
            for a in range(2):
                th[k] = p(f"buffer_load_dwordx4 {vr(b+4*a)}, v{HA+a}, {SWS}, s56 offen offset:{1024*(k&3)} sc1")
            if k & 3 == 3: p(f"s_add_u32 s56, s56, 4096")
            st["n"] += 1
        DEPTH = 5
        wfr = {k: WF + 8 * k for k in range(18)}
        tfr = {}
        while free and st["n"] < 28: issue_h()
        for k in range(28):
            kk = k + 8
            if 18 <= kk < 28:
                b = free.pop(); wfr[kk] = b
                tfr[kk] = frag2(b, slot_of[kk])
            p.wait(vm=th[k], lg=tfr.get(k))
            for a in range(2):
                for t in range(2):
                    c = ACC + 16 * (2 * a + t)
                    p(MF(c, wfr[k] + 4 * t, hb[k] + 4 * a, None if k == 0 else c))
            free.append(hb[k]); free.append(wfr[k])
            while st["n"] < 28 and st["n"] - k - 1 < DEPTH and free: issue_h()
        self.stamp(23)
        self.write_partials(ACC, 4)
        self.stamp(24)
        p("s_branch L_final")

    def kv_setup(self, PV, T):
        p = self.p
        p(f"""s_mov_b32 s92, 0
        s_mov_b32 s93, 0""")
        for add, reg in ((56, "s92"), (59, "s92"), (112, "s92"), (115, "s92"), (0, "s93"), (3, "s93")):
            p(f"""s_add_u32 s54, {sP0}, {add}
            s_mul_i32 s54, s54, 5462
            s_lshr_b32 s54, s54, 16
            s_bitset1_b32 {reg}, s54""")
        p(f"""s_lshl_b32 s93, s93, 16
        s_or_b32 s93, s93, s92
        s_mul_i32 s92, s92, 0x10001
        s_lshl_b32 s54, {sRBA}, 2
        s_mul_i32 s90, {sW}, 3
        s_add_u32 s90, s90, s54
        s_add_u32 s91, s54, {sW}
        v_lshrrev_b32 v{T}, 4, v0
        v_add_u32 v{T+1}, s90, v{T}
        v_max_u32 v{T+1}, 8, v{T+1}
        v_subrev_u32 v{T+1}, 8, v{T+1}
        v_mov_b32 v{T+2}, s91
        v_cmp_eq_u32 vcc, 3, v{T}
        v_cndmask_b32 v{T+1}, v{T+1}, v{T+2}, vcc
        v_and_b32 v{T}, 15, v0
        v_lshlrev_b32 v{T}, 3, v{T}
        v_lshl_add_u32 v{T}, v{T+1}, 7, v{T}
        v_add_u32 v{PV}, {FLAGS}, v{T}
        v_lshlrev_b32 v{PV+1}, 4, v0
        s_lshl_b32 s54, {sP0}, 9
        s_mul_i32 s89, {sW}, 6144
        s_lshl_b32 s88, {sW}, 11""")
        for i in range(3):
            p(f"""s_add_u32 s60, s90, {i}
            s_max_u32 s60, s60, 8
            s_sub_u32 s60, s60, 8
            s_mul_i32 s60, s60, {QKV_T}
            s_add_u32 s60, s60, s54
            s_add_u32 s{80+2*i}, s60, {56*512}
            s_add_u32 s{81+2*i}, s60, {112*512}""")
        p(f"""s_mul_i32 s86, s91, {QKV_T}
        s_add_u32 s86, s86, s54""")
        self.PVL = PV + 1
    def kv_dma(self):
        p = self.p
        out = []
        def two(m0, so):
            out.append(lambda: p(f"""s_add_u32 m0, {m0}
            buffer_load_dwordx4 v{self.PVL}, {SWS}, {so} offen offset:0 sc1 lds"""))
            out.append(lambda: p(f"buffer_load_dwordx4 v{self.PVL}, {SWS}, {so} offen offset:1024 sc1 lds"))
        two(f"s88, {QOFF}", "s86")
        for off, b in ((KOFF, 80), (VOFF, 81)):
            for i in range(3): two(f"s89, {off + 2048*i}", f"s{b+2*i}")
        return out
    def kv_fix(self, T):
        p = self.p
        p(f"""s_cmp_eq_u32 {sODD}, 1
        s_cselect_b32 s60, 0, 3
        s_cselect_b32 s62, 0, {3*512+8}
        s_add_u32 s60, s60, {sP0}
        s_and_b32 s60, s60, 3
        s_lshl_b32 s60, s60, 6
        v_and_b32 v{T+4}, 31, v0
        v_lshlrev_b32 v{T+4}, 4, v{T+4}
        v_xor_b32 v{T+4}, s60, v{T+4}
        v_add_u32 v{T+4}, s62, v{T+4}
        v_add_u32 v{T+5}, s88, v{T+4}
        v_lshrrev_b32 v{T+6}, 5, v0
        v_mul_u32_u24 v{T+6}, {VOFF}, v{T+6}
        v_add_u32 v{T+4}, v{T+4}, v{T+6}
        v_add_u32 v{T+4}, s89, v{T+4}
        v_mov_b32 v{T+8}, 0x3f80
        v_mov_b32 v{T+9}, 0
        v_mov_b32 v{T+11}, 0
        v_mov_b32 v{T+13}, 0
        v_mov_b32 v{T+15}, 0
        v_cmp_lt_u32 vcc, 31, v0""")
        for i in range(3):
            p(f"""s_add_u32 s60, s90, {i}
            s_cmp_lt_u32 s60, 8
            s_cselect_b32 s60, 0xf14a, 0
            v_mov_b32 v{T+10+2*i}, s60
            v_cndmask_b32 v{T+10+2*i}, v{T+10+2*i}, v{T+8}, vcc""")
        p.wait_all(vm=True, force=True)
        for i in range(3):
            p(f"ds_write_b64 v{T+4}, {vr(T+10+2*i,2)} offset:{2048*i}")
        p(f"ds_write_b64 v{T+5}, {vr(T+8,2)} offset:{QOFF}")

    def roleA(self):
        p = self.p
        p.raw("@PADS_OFF")
        p.label("L_roleA")
        p.reset_counters()
        XF = 8
        ACC = 120
        WB = 184
        AX = 216
        AQ = 220
        A1 = 221
        T = 228
        SUM, SQ = 2, 4
        p("s_memrealtime s[60:61]")
        self.prologue2()
        p(f"""s_or_b32 s62, s2, {sWAVE}
        s_waitcnt lgkmcnt(0)
        s_cmp_lg_u32 s62, 0
        s_cbranch_scc1 L_A_notag
        s_or_b32 s60, s60, 1
        v_mov_b32 v{T}, s60
        v_mov_b32 v{T+1}, s61
        v_mov_b32 v{T+2}, 0
        v_mov_b32 v{T+3}, 0
        s_mov_b64 exec, 1
        buffer_atomic_cmpswap_x2 {vr(T)}, off, {SDBG}, 0 sc1
        s_mov_b64 exec, -1
        L_A_notag:
        s_cmp_eq_u32 {sHELP}, 0
        s_cbranch_scc1 L_A_nohp""")
        self.helper_prefetch(T + 8)
        p.label("L_A_nohp")
        if self.opt.get("pad", 768):
            p(f"""s_mov_b64 exec, 0
            s_cmp_eq_u32 {sW}, 1
            s_cbranch_scc1 L_walk1
            s_cmp_eq_u32 {sW}, 2
            s_cbranch_scc1 L_walk2
            s_cmp_eq_u32 {sW}, 3
            s_cbranch_scc1 L_walk3
            s_branch L_walk0
            L_walk_done:
            s_mov_b64 exec, -1""")
        self.stamp(44)
        self.attn_setup()
        p(f"""s_cmp_eq_u32 {sHELP}, 0
        s_cbranch_scc1 L_A_work""")
        self.get_nonce(T + 4)
        p("s_branch L_A_attn")
        p.label("L_A_work")
        p.reset_counters()
        p(f"""v_and_b32 v{T}, 31, v0
        v_lshrrev_b32 v{T+1}, 5, v0
        v_bfe_u32 v{T+2}, v0, 1, 3
        v_xor_b32 v{T+1}, v{T+1}, v{T+2}
        v_lshlrev_b32 v{T+1}, 4, v{T+1}
        v_lshl_or_b32 v{AX}, v{T}, 7, v{T+1}
        s_lshl_b32 s54, {sW}, 12
        v_add_u32 v{AX}, s54, v{AX}
        v_xor_b32 v{AX+1}, 32, v{AX}
        v_xor_b32 v{AX+2}, 64, v{AX}
        v_xor_b32 v{AX+3}, 0x60, v{AX}""")
        self.trlane(T)
        p(f"""v_mul_u32_u24 v{AQ}, 192, v{T}
        v_add_u32 v{AQ}, v{AQ}, v{T+1}
        v_add_u32 v{AQ}, {WQS}, v{AQ}
        v_lshlrev_b32 v{A1}, 7, v{T}
        v_add_u32 v{A1}, v{A1}, v{T+1}
        v_lshrrev_b32 v{T+2}, 1, v{T+2}
        v_lshl_or_b32 v{A1}, v{T+2}, 6, v{A1}
        v_add_u32 v{A1}, {W1S}, v{A1}
        v_xor_b32 v{A1+1}, 64, v{A1}""")
        ST = T
        NV = T + 6
        MFR = T + 8
        CA = T + 12
        SA = T + 14
        F = T + 16
        HA = 223
        CQ = ACC + 48
        p(f"""v_lshlrev_b32 v{CA}, 3, v0
        v_add_u32 v{CA}, {ST_CSQ}, v{CA}
        v_lshlrev_b32 v{HA}, 4, v0
        v_add_u32 v{CA+1}, {ST_CS1}, v{HA}
        v_and_b32 v{SA}, 31, v0
        v_lshlrev_b32 v{SA}, 4, v{SA}
        v_lshrrev_b32 v{SA+1}, 5, v0
        v_mul_u32_u24 v{SA+1}, 0x240, v{SA+1}
        v_xor_b32 v{SA}, v{SA}, v{SA+1}
        v_xor_b32 v{SA+1}, 0x480, v{SA}
        s_lshl_b32 s54, {sRB}, 2
        s_add_u32 s54, s54, {sW}
        s_mul_i32 s55, s54, {QKV_T}
        s_mul_i32 s56, {sCB}, {12*512}
        s_add_u32 s55, s55, s56
        s_add_u32 s56, s55, 4096
        s_mul_i32 s57, {sCB}, 3
        s_mul_i32 s62, s54, {H_T}
        s_lshl_b32 s63, {sCB}, 13
        s_add_u32 s62, s62, s63
        s_add_u32 s62, s62, {HOFF}
        s_add_u32 s63, s62, 4096
        s_mov_b32 s59, 0x3f803f80""")
        for r in range(4): p(f"v_mov_b32 v{SUM+r}, 0")
        def rd_x(ks):
            c, s = divmod(ks, 4)
            return p(f"ds_read_b128 {vr(XF+4*ks)}, v{AX+s} offset:{XS + (c%4)*16384}")
        def rd_q(i):
            ks, t = divmod(i, 3)
            c, s = divmod(ks, 4); b = WB + 4 * (i % 8)
            if t == 0: rd_x(ks)
            for jj in range(2):
                t0 = p(f"ds_read_b64_tr_b16 {vr(b+2*jj,2)}, v{AQ} offset:{(c%4)*12288 + (16*s+4*jj)*192 + 64*t}")
            return t0
        def stats(c):
            if self.opt.get("nostat"): return
            for i in range(16):
                x = XF + 16 * c + i
                p(f"v_dot2_f32_bf16 v{SUM+(i&1)}, v{x}, s59, v{SUM+(i&1)}")
                p(f"v_dot2_f32_bf16 v{SQ+(i&1)}, v{x}, v{x}, v{SQ+(i&1)}")
        self.stamp(43)
        self.barrier()
        self.stamp(1)
        LA = 6
        tok = {i: rd_q(i) for i in range(LA)}
        for i in range(84):
            ks, t = divmod(i, 3)
            a = ACC + 16 * t
            if i == 48:
                tn = p(f"buffer_load_dwordx2 {vr(NV,2)}, off, {SDBG}, 0 sc1")
            p.wait(lg=tok[i])
            p(MF(a, WB + 4 * (i % 8), XF + 4 * ks, None if ks == 0 else a))
            if i + LA < 84:
                if (i + LA) % 12 == 0:
                    p("s_barrier")
                    self.stamp(1 + (i + LA) // 12, True)
                tok[i + LA] = rd_q(i + LA)
            if i % 12 == 11: stats(i // 12)
        p(f"""v_add_f32 v{SUM}, v{SUM}, v{SUM+1}
        v_add_f32 v{SQ}, v{SQ}, v{SQ+1}
        v_mov_b32 v{SUM+1}, v{SUM}
        v_mov_b32 v{SQ+1}, v{SQ}
        v_permlane32_swap_b32 v{SUM}, v{SUM+1}
        v_permlane32_swap_b32 v{SQ}, v{SQ+1}
        v_add_f32 v{SUM}, v{SUM}, v{SUM+1}
        v_add_f32 v{SQ}, v{SQ}, v{SQ+1}
        v_mul_f32 v{SUM}, {fbits(-1.0/448)}, v{SUM}
        v_mul_f32 v{SQ}, {fbits(1.0/448)}, v{SQ}
        v_fma_f32 v{SQ}, -v{SUM}, v{SUM}, v{SQ}
        v_max_f32 v{SQ}, 0, v{SQ}
        v_add_f32 v{SQ}, {fbits(1e-5)}, v{SQ}
        v_rsq_f32 v{ST}, v{SQ}
        v_sqrt_f32 v{ST+2}, v{SQ}
        v_cvt_pk_bf16_f32 v{MFR}, v{SUM}, v{SUM}
        v_and_b32 v{MFR+1}, 0xffff0000, v{MFR}
        v_sub_f32 v{MFR+1}, v{SUM}, v{MFR+1}
        v_cvt_pk_bf16_f32 v{MFR}, v{SUM}, v{MFR+1}
        v_mul_f32 v{ST+4}, {fbits(-LOG2E)}, v{ST}
        v_mov_b32 v{MFR+1}, v{MFR}
        v_mov_b32 v{MFR+2}, v{MFR}
        v_mov_b32 v{MFR+3}, v{MFR}""")
        for t in range(3):
            p(f"v_mov_b32 v{CQ+4*t+2}, 0")
            p(f"v_mov_b32 v{CQ+4*t+3}, 0")
            p(f"""s_add_u32 s58, s57, {t}
            s_cmp_lt_u32 s58, 14
            s_cselect_b32 s58, {fbits(28 ** -0.5 * LOG2E)}, 1.0
            v_mul_f32 v{F+2*t}, s58, v{ST}""")
        Lt = self.lab("tag")
        p.wait(vm=tn)
        p(f"""v_readfirstlane_b32 s100, v{NV}
        v_readfirstlane_b32 s101, v{NV+1}
        s_cmp_lg_u32 s100, 0
        s_cbranch_scc1 {Lt}""")
        self.get_nonce(NV)
        p.label(Lt)
        p(f"""v_mov_b32 v{SUM}, {ST_CNT+16}
        ds_write_b64 v{SUM}, {vr(NV,2)}""")
        self.stamp(8)
        self.barrier()
        self.stamp(9)
        for t in range(3):
            tc = p(f"ds_read_b64 {vr(CQ+4*t,2)}, v{CA} offset:{512*t}")
        def rd_1(i):
            g, t = divmod(i, 2)
            hc, s = divmod(g, 4); b = WB + 4 * (i % 8)
            for jj in range(2):
                t0 = p(f"ds_read_b64_tr_b16 {vr(b+2*jj,2)}, v{A1+t} offset:{((hc+4)%8)*8192 + (16*s+4*jj)*128}")
            return t0
        p.wait(lg=tc)
        for t in range(3):
            a = ACC + 16 * t
            p(MF(a, CQ + 4 * t, MFR, a))
        LB = 7
        tk = {i: rd_1(i) for i in range(LB)}
        PK = ACC
        for t in range(3):
            a = ACC + 16 * t
            for i in range(8):
                p(f"v_pk_mul_f32 {vr(a+2*i,2)}, {vr(a+2*i,2)}, {vr(F+2*t,2)} op_sel_hi:[1,0]")
            for i in range(8):
                p(f"v_cvt_pk_bf16_f32 v{PK+8*t+i}, v{a+2*i}, v{a+2*i+1}")
        def st_q(n):
            t, u = divmod(n, 2)
            so, im = ("s55", 2048 * t) if t < 2 else ("s56", 0)
            p(f"buffer_store_dwordx4 {vr(PK+8*t+4*u)}, v{SA+u}, {SWS}, {so} offen offset:{im} sc1")
        def st_h(k, o):
            so, im = ("s62", 1024 * k) if k < 4 else ("s63", 1024 * (k - 4))
            p(f"buffer_store_dwordx4 {vr(o)}, v{HA}, {SWS}, {so} offen offset:{im} sc1")
        self.stamp(10)
        A2 = ACC + 32
        qpace = self.opt.get("qpace", 4); hpace = self.opt.get("hpace", 5)
        def silu(half, E, OUT, now):
            CF = E + 16
            for t in range(2):
                tc = p(f"ds_read_b128 {vr(CF+4*t)}, v{CA+1} offset:{2048*half + 1024*t}")
            p.wait(lg=tc)
            for t in range(2):
                p(MF(A2 + 16 * t, CF + 4 * t, MFR, A2 + 16 * t))
            for n in range(4):
                a = A2 + 8 * n; e = E + 8 * (n & 1); o = OUT + 4 * n
                for i in range(4):
                    p(f"v_pk_mul_f32 {vr(e+2*i,2)}, {vr(a+2*i,2)}, {vr(ST+4,2)} op_sel_hi:[1,0]")
                for i in range(8):
                    p(f"v_exp_f32 v{e+i}, v{e+i}")
                for i in range(4):
                    p(f"v_pk_fma_f32 {vr(e+2*i,2)}, {vr(e+2*i,2)}, {vr(ST+2,2)}, {vr(ST+2,2)} op_sel_hi:[1,0,0]")
                for i in range(8):
                    p(f"v_rcp_f32 v{e+i}, v{e+i}")
                for i in range(4):
                    p(f"v_pk_mul_f32 {vr(e+2*i,2)}, {vr(e+2*i,2)}, {vr(a+2*i,2)}")
                for i in range(4):
                    p(f"v_cvt_pk_bf16_f32 v{o+i}, v{e+2*i}, v{e+2*i+1}")
                if n in now: st_h(4 * half + n, o)
        for g in range(56):
            ks = g % 28
            for t in range(2):
                a = A2 + 16 * t; i = 2 * g + t
                p.wait(lg=tk[i])
                p(MF(a, WB + 4 * (i % 8), XF + 4 * ks, None if ks == 0 else a))
                if i + LB < 112:
                    if (i + LB) % 16 == 0:
                        p("s_barrier")
                        self.stamp(10 + (i + LB) // 16, True)
                    tk[i + LB] = rd_1(i + LB)
            if g < 28 and g % qpace == 0 and g // qpace < 6: st_q(g // qpace)
            if g >= 28 and (g - 28) % hpace == hpace // 2 and (g - 28) // hpace < 2: st_h(2 + (g - 28) // hpace, ACC + 16 + 8 + 4 * ((g - 28) // hpace))
            if g == 27:
                self.stamp(33)
                self.signal(0, sRB, sCB, F)
                self.stamp(34)
                p("s_barrier")
                self.stamp(35)
                silu(0, ACC, ACC + 16, (0, 1))
                self.stamp(36)
        p.raw("@PADS_ON")
        self.stamp(17)
        self.barrier()
        self.stamp(18)
        silu(1, 8, 32, (0, 1, 2, 3))
        self.stamp(19)
        self.attention()
        self.wo_final_A()

    KA, VA = 250, 252
    def attn_setup(self):
        p = self.p
        KA, VA, T = self.KA, self.VA, 8
        p(f"""v_lshrrev_b32 v{T}, 5, v0
        v_add_u32 v{T+1}, {sP0}, v{T}
        v_and_b32 v{T+1}, 3, v{T+1}
        v_lshlrev_b32 v{T+1}, 6, v{T+1}
        v_and_b32 v{T+2}, 31, v0
        v_lshlrev_b32 v{T+3}, 4, v{T+2}
        v_xor_b32 v{T+1}, v{T+1}, v{T+3}
        v_lshl_or_b32 v{KA}, v{T}, 9, v{T+1}
        s_lshl_b32 s54, {sW}, 11
        v_add_u32 v{KA}, s54, v{KA}
        v_xor_b32 v{KA+1}, 0x480, v{KA}
        v_lshlrev_b32 v{T}, 2, v{T}
        v_sub_u32 v{T+2}, v{T+2}, v{T}""")
        for r in range(16):
            p(f"v_cmp_gt_i32 s[{64+2*r}:{65+2*r}], {8*(r>>2)+(r&3)}, v{T+2}")
        p(f"""v_bfe_u32 v{T}, v0, 4, 1
        v_and_b32 v{T+1}, 1, v0
        v_lshl_or_b32 v{T}, v{T}, 1, v{T+1}
        v_add_u32 v{T+1}, {sP0}, v{T}
        v_and_b32 v{T+1}, 3, v{T+1}
        v_lshrrev_b32 v{T+2}, 5, v0
        v_xor_b32 v{T+1}, v{T+1}, v{T+2}
        v_lshlrev_b32 v{T+1}, 6, v{T+1}
        v_lshl_or_b32 v{T+1}, v{T}, 9, v{T+1}
        v_bfe_u32 v{T+2}, v0, 2, 2
        v_lshl_or_b32 v{T+1}, v{T+2}, 4, v{T+1}
        v_bfe_u32 v{T+2}, v0, 1, 1
        v_lshl_or_b32 v{T+1}, v{T+2}, 3, v{T+1}
        v_add_u32 v{VA}, s54, v{T+1}
        v_xor_b32 v{VA+1}, 0x80, v{VA}""")

    def attention(self):
        p = self.p
        p.label("L_A_attn")
        S = 64
        O = 208
        QF = 224
        KB = 232
        KA, VA = self.KA, self.VA
        MX = 248
        MK = 56
        T = 2
        self.stamp(20)
        self.barrier()
        self.stamp(21)
        for u in range(2):
            p(f"ds_read_b128 {vr(QF+4*u)}, v{KA+u} offset:{QOFF}")
        order = [0, 8, 1, 2, 3, 4, 5, 6, 7]
        KR = [O, O + 8, KB, KB + 8]
        def rd_k(n):
            j = order[n]; b = KR[n % 4]
            for u in range(2):
                t0 = p(f"ds_read_b128 {vr(b+4*u)}, v{KA+u} offset:{KOFF + 2048*j}")
            return t0
        fill = []
        fill.append([f"v_mov_b32 v{T}, 0xffff", f"v_mov_b32 v{T+1}, 0xffff0000"])
        mk = []
        for i in range(8):
            mk += [f"v_cndmask_b32 v{MK+i}, 0, v{T}, s[{64+4*i}:{65+4*i}]",
                   f"v_cndmask_b32 v{T+2+(i&1)}, 0, v{T+1}, s[{66+4*i}:{67+4*i}]",
                   f"v_or_b32 v{MK+i}, v{MK+i}, v{T+2+(i&1)}"]
        def maxes(j, first=False):
            a = S + 16 * j; r = []
            for i in range(8):
                m = MX + (i & 1)
                if first and i < 2: r.append(f"v_max_f32 v{m}, v{a+2*i}, v{a+2*i+1}")
                else: r.append(f"v_max3_f32 v{m}, v{a+2*i}, v{a+2*i+1}, v{m}")
            return r
        comb = [f"v_cndmask_b32 v{S+r}, v{S+128+r}, v{S+r}, s[{64+2*r}:{65+2*r}]" for r in range(16)]
        work = {0: fill[0] + mk[:8], 1: mk[8:20], 2: mk[20:] + comb[:8], 3: comb[8:] + maxes(1, True)[:4],
                4: maxes(1, True)[4:] + maxes(0), 5: maxes(2) + maxes(3)[:4], 6: maxes(3)[4:] + maxes(4),
                7: maxes(5), 8: maxes(6)}
        tok = {n: rd_k(n) for n in range(3)}
        for n in range(9):
            p.wait(lg=tok[n])
            j = order[n]; b = KR[n % 4]; a = S + 16 * j
            w = work[n]; h = len(w) // 2
            p(MF(a, b, QF, None))
            if n + 3 < 9: tok[n + 3] = rd_k(n + 3)
            for x in w[:h]: p(x)
            p(MF(a, b + 4, QF + 4, a))
            for x in w[h:]: p(x)
        def rd_v(j, b):
            for s in range(2):
                for jj in range(2):
                    t0 = p(f"ds_read_b64_tr_b16 {vr(b+4*s+2*jj,2)}, v{VA+jj} offset:{VOFF + 2048*j + 256*s}")
            return t0
        vorder = [1, 2, 3, 4, 5, 6, 7, 0, 8]
        vt = [None] * 9
        vt[0] = rd_v(vorder[0], KB + 8)
        for x in maxes(7): p(x)
        p(f"""v_max_f32 v{MX}, v{MX}, v{MX+1}
        v_mov_b32 v{MX+1}, v{MX}
        v_permlane32_swap_b32 v{MX}, v{MX+1}
        v_max_f32 v{MX}, v{MX}, v{MX+1}""")
        self.stamp(22)
        def sub(j):
            a = S + 16 * j
            for i in range(8):
                p(f"v_pk_add_f32 {vr(a+2*i,2)}, {vr(a+2*i,2)}, {vr(MX,2)} op_sel_hi:[1,0] neg_lo:[0,1] neg_hi:[0,1]")
        def pvm(n, pa, s):
            b = KB + 8 * ((n + 1) & 1)
            if s == 0: p.wait(lg=vt[n])
            p(MF(O, b + 4 * s, pa + 4 * s, None if (n == 0 and s == 0) else O))
        sub(vorder[0])
        for n in range(8):
            j = vorder[n]; a = S + 16 * j
            if n > 0: pvm(n - 1, S + 16 * vorder[n - 1], 0)
            for i in range(8): p(f"v_exp_f32 v{a+i}, v{a+i}")
            if n > 0: pvm(n - 1, S + 16 * vorder[n - 1], 1)
            for i in range(8, 16): p(f"v_exp_f32 v{a+i}, v{a+i}")
            vt[n + 1] = rd_v(vorder[n + 1], KB + 8 * (n & 1))
            for i in range(8): p(f"v_cvt_pk_bf16_f32 v{a+i}, v{a+2*i}, v{a+2*i+1}")
            if n < 7: sub(vorder[n + 1])
            if n == self.opt.get("sigh", 3):
                Lh = self.lab("noh")
                p(f"""s_cmp_eq_u32 {sHELP}, 1
                s_cbranch_scc1 {Lh}""")
                self.signal(1, sRB, sCB, T)
                p.label(Lh)
        for i in range(8):
            p(f"v_bfi_b32 v{S+8+i}, v{MK+i}, 0, v{S+i}")
            p(f"v_and_b32 v{S+i}, v{MK+i}, v{S+i}")
        pvm(7, S, 0); pvm(7, S, 1)
        pvm(8, S + 8, 0); pvm(8, S + 8, 1)
        p(f"""s_cmp_eq_u32 {sODD}, 1
        s_cselect_b64 s[54:55], -1, 0
        s_cselect_b32 s56, -1, 0
        s_mov_b32 s57, 0
        s_mov_b32 s58, 0
        s_cselect_b32 s59, 0, -1
        s_lshl_b32 s60, {sRBA}, 2
        s_add_u32 s60, s60, {sW}
        s_lshl_b32 s60, s60, 15
        s_lshl_b32 s61, {sHD}, 11
        s_add_u32 s62, s60, s61
        s_add_u32 s62, s62, {OOFF}
        v_lshlrev_b32 v{T+12}, 4, v0
        s_mov_b64 exec, 1
        v_mov_b32 v{T+8}, {ST_CNT}
        v_mov_b32 v{T+9}, 1
        ds_add_u32 v{T+8}, v{T+9}
        s_mov_b64 exec, -1
        v_cndmask_b32 v{T}, v{O+12}, v{O}, s[54:55]
        v_mov_b32 v{T+1}, v{T}
        v_permlane32_swap_b32 v{T}, v{T+1}
        v_cndmask_b32 v{T}, v{T+1}, v{T}, s[54:55]
        v_rcp_f32 v{T}, v{T}
        v_cndmask_b32 v{T+2}, v{T}, 0, s[56:57]
        v_cndmask_b32 v{T+4}, v{T}, 0, s[58:59]""")
        for i in range(8):
            f = T + 2 if i < 2 else (T + 4 if i >= 6 else T)
            p(f"v_pk_mul_f32 {vr(O+2*i,2)}, {vr(O+2*i,2)}, {vr(f,2)} op_sel_hi:[1,0]")
        for i in range(8):
            p(f"v_cvt_pk_bf16_f32 v{O+i}, v{O+2*i}, v{O+2*i+1}")
        for u in range(2):
            p(f"buffer_store_dwordx4 {vr(O+4*u)}, v{T+12}, {SWS}, s62 offen offset:{1024*u} sc1")
        self.stamp(23)

    def wo_final_A(self):
        p = self.p
        VD, AD, T = 4, 8, 12
        PA = 24
        WF = 32
        OF = 96
        ACC = 160
        p(f"s_lshl_b32 s56, {sW}, 14")
        self.w128_lane(VD, AD, T + 4, "s56")
        self.signal(2, sRBA, sHD, 2)
        self.stamp(24)
        p(f"""s_cmp_eq_u32 {sHELP}, 1
        s_cbranch_scc1 L_fin""")
        L0 = self.lab("kvfree")
        p(f"v_mov_b32 v{T}, {ST_CNT}")
        p.label(L0)
        p(f"ds_read_b32 v{T+1}, v{T}")
        p.wait_all(lg=True, force=True)
        p(f"""v_readfirstlane_b32 s60, v{T+1}
        s_cmp_lt_u32 s60, 4
        s_cbranch_scc1 {L0}""")
        p(f"""s_mul_i32 s57, {sW}, {112*896}
        s_lshl_b32 s58, {sNB}, 7
        s_add_u32 s57, s57, s58""")
        for g in range(4):
            p(f"s_add_u32 m0, s56, {4096*g}")
            for i in range(4 if g < 3 else 2):
                two = p(f"buffer_load_dwordx4 v{VD+i}, {SWO}, s57 offen offset:{1024*i} lds")
            p(f"s_add_u32 s57, s57, {32*896}")
        p(f"""v_and_b32 v{T}, 31, v0
        v_lshlrev_b32 v{T}, 3, v{T}
        s_lshl_b32 s54, {sMB}, 8
        s_add_u32 s54, s54, {FLAGS + 2*8192}
        v_add_u32 v{T}, s54, v{T}
        v_lshlrev_b32 v{T+4}, 4, v0
        v_add_u32 v{T+5}, {O_T}, v{T+4}
        s_lshl_b32 s57, {sMB}, 16
        s_lshl_b32 s58, {sW}, 13
        s_add_u32 s57, s57, s58
        s_add_u32 s57, s57, {OOFF}
        s_add_u32 s62, s57, 4096
        s_lshl_b32 s54, {sW}, 2
        s_lshl_b32 s58, 0x000f000f, s54
        s_mov_b32 s59, 0""")
        self.xload()
        tp = self.poll_issue(T, T + 2)
        self.part_addr("s56", PA)
        p.wait(vm=two)
        rho = [0, 24, 56, 80]
        for k in range(8):
            for t in range(2):
                for jj in range(2):
                    p(f"ds_read_b64_tr_b16 {vr(WF+8*k+4*t+2*jj,2)}, v{AD+t} offset:{(rho[k>>1]+16*(k&1)+4*jj)*128}")
        self.stamp(25)
        self.poll(T, T + 2, "s[58:59]", first=tp)
        self.stamp(26)
        toks = []
        for k in range(8):
            for a in range(2):
                so, im = ("s57", 1024 * k) if k < 4 else ("s62", 1024 * (k - 4))
                t0 = p(f"buffer_load_dwordx4 {vr(OF+8*k+4*a)}, v{T+4+a}, {SWS}, {so} offen offset:{im} sc1")
            toks.append(t0)
        p.wait_all(lg=True)
        for k in range(8):
            p.wait(vm=toks[k])
            for a in range(2):
                for t in range(2):
                    c = ACC + 16 * (2 * a + t)
                    p(MF(c, WF + 8 * k + 4 * t, OF + 8 * k + 4 * a, None if k == 0 else c))
        self.write_partials(ACC, PA)
        self.stamp(27)

    def final(self):
        p = self.p
        p.label("L_final")
        T = 8
        p(f"""v_lshrrev_b32 v{T}, 3, v0
        s_lshl_b32 s54, {sWAVE}, 3
        v_add_u32 v{T}, s54, v{T}
        v_and_b32 v{T+1}, 7, v0
        v_lshlrev_b32 v{T+2}, 1, v{T+1}
        v_xor_b32 v{T}, v{T}, v{T+2}
        v_lshlrev_b32 v{T}, 4, v{T}
        v_lshl_or_b32 v{T}, v{T+1}, 10, v{T}
        v_add_u32 v{T+1}, {W2R}, v{T}
        v_add_u32 v{T+2}, {W2R + 2*W2W}, v{T}
        v_mov_b32 v12, {fbits(-LOG2E)}
        v_mov_b32 v14, 1.0""")
        X = 96
        p("s_waitcnt vmcnt(0)")
        for i in range(4):
            p(f"v_lshlrev_b32 v{X+2*i}, 16, v{240+i}")
            p(f"v_and_b32 v{X+2*i+1}, 0xffff0000, v{240+i}")
        p("s_waitcnt lgkmcnt(0)")
        p.reset_counters()
        p("s_barrier")
        self.stamp(30)
        Fp, Sp = 32, 64
        tf = []
        for w in range(4):
            for e in range(2):
                tf.append(p(f"ds_read_b128 {vr(Fp+8*w+4*e)}, v{T+1+(w>>1)} offset:{(w&1)*W2W + e*8192}"))
        ts = []
        for w in range(4):
            for e in range(2):
                ts.append(p(f"ds_read_b128 {vr(Sp+8*w+4*e)}, v{T} offset:{w*16384 + e*8192}"))
        def red(b):
            for i in range(4):
                p(f"v_pk_add_f32 {vr(b+2*i,2)}, {vr(b+2*i,2)}, {vr(b+8+2*i,2)}")
                p(f"v_pk_add_f32 {vr(b+16+2*i,2)}, {vr(b+16+2*i,2)}, {vr(b+24+2*i,2)}")
            for i in range(4):
                p(f"v_pk_add_f32 {vr(b+2*i,2)}, {vr(b+2*i,2)}, {vr(b+16+2*i,2)}")
        p.wait(lg=tf[-1])
        red(Fp)
        e = Fp + 8
        for i in range(4):
            p(f"v_pk_mul_f32 {vr(e+2*i,2)}, {vr(Fp+2*i,2)}, v[12:13] op_sel_hi:[1,0]")
        for i in range(8):
            p(f"v_exp_f32 v{e+i}, v{e+i}")
        for i in range(4):
            p(f"v_pk_add_f32 {vr(e+2*i,2)}, {vr(e+2*i,2)}, v[14:15] op_sel_hi:[1,0]")
        for i in range(8):
            p(f"v_rcp_f32 v{e+i}, v{e+i}")
        p.wait(lg=ts[-1])
        red(Sp)
        for i in range(4):
            p(f"v_pk_mul_f32 {vr(e+2*i,2)}, {vr(e+2*i,2)}, {vr(Fp+2*i,2)}")
        for i in range(4):
            p(f"v_pk_fma_f32 {vr(X+2*i,2)}, {vr(Sp+2*i,2)}, {vr(e+2*i,2)}, {vr(X+2*i,2)}")
        for i in range(4):
            p(f"v_cvt_pk_bf16_f32 v{X+8+i}, v{X+2*i}, v{X+2*i+1}")
        p(f"buffer_store_dwordx4 {vr(X+8)}, v244, {SOUT}, 0 offen {self.opt.get('outf', '')}")
        if self.opt.get("span"):
            p(f"""s_waitcnt vmcnt(0)
            s_memtime s[60:61]
            s_memrealtime s[62:63]
            s_waitcnt lgkmcnt(0)
            s_sub_u32 s60, s60, s96
            s_sub_u32 s62, s62, s98
            v_mov_b32 v2, s60
            v_mov_b32 v3, s62
            s_sub_u32 s60, s2, 31
            s_lshl_b32 s60, s60, 3
            s_lshl_b32 s61, {sWAVE}, 10
            s_add_u32 s60, s60, s61
            s_mov_b64 exec, 1
            buffer_store_dwordx2 v[2:3], off, {SDBG}, s60""")
        p.label("L_fin")
        if self.prof:
            self.stamp(31)
            p("s_waitcnt vmcnt(0)")
            self.stamp(32)
            p("s_memrealtime s[96:97]")
            p("s_waitcnt lgkmcnt(0)")
            p("v_writelane_b32 v255, s96, 63")
            self.stamp_flush()
        p.label("L_end")

    def build(self):
        self.prologue()
        self.roleB()
        self.roleA()
        self.final()
        body = self.p.text(self.opt.get('pad', 768))
        hdr = open("cdna_kernels/" + KN + ".s.ref").read().split("\n")
        top = [l for l in hdr if l.startswith(";") and "@launch" not in l and "Override" not in l and "grid=ceil" not in l]
        s = "\n".join(top) + "\n; @launch grid=(256,1,1) block=(512,1,1) lds=163840\n"
        s += f""".amdgcn_target "amdgcn-amd-amdhsa--gfx950"
.text
.globl {KN}_kernel
.p2align 8
.type {KN}_kernel,@function
{KN}_kernel:
{body}
    s_endpgm
L_code_end:
.set CODE_BYTES, L_code_end - {KN}_kernel - 128
.section .rodata,"a"
.p2align 6
.amdhsa_kernel {KN}_kernel
  .amdhsa_next_free_vgpr 256
  .amdhsa_next_free_sgpr 102
  .amdhsa_accum_offset 256
  .amdhsa_group_segment_fixed_size 0
  .amdhsa_kernarg_size 72
  .amdhsa_user_sgpr_count 2
  .amdhsa_user_sgpr_kernarg_segment_ptr 1
  .amdhsa_system_sgpr_workgroup_id_x 1
.end_amdhsa_kernel
"""
        return s

if __name__ == "__main__":
    prof = 2 if "--prof2" in sys.argv else (1 if "--prof" in sys.argv else 0)
    opt = {}
    for a in sys.argv[1:]:
        if a.startswith("--") and "=" in a:
            k, v = a[2:].split("=")
            opt[k] = int(v) if v.lstrip("-").isdigit() else v
    out = [a for a in sys.argv[1:] if not a.startswith("--")]
    g = G(prof, opt)
    s = g.build()
    path = out[0] if out else "cdna_kernels/" + KN + ".s"
    open(path, "w").write(s)
    print("wrote", path, "nops inserted:", g.p.nnop)
```
